```python
import torch

def _softmax(x, axis=-1):
    return torch.softmax(x, dim=axis)
def _gelu(x):
    return torch.nn.functional.gelu(x, approximate="tanh")
def _silu(x):
    return torch.nn.functional.silu(x)
def _sigmoid(x):
    return torch.sigmoid(x)
def _layernorm(x, axis=-1, eps=1e-5):
    m = x.mean(dim=axis, keepdim=True)
    v = x.var(dim=axis, keepdim=True, unbiased=False)
    return (x - m) / torch.sqrt(v + eps)
def _scatter_add(tgt, idx, src, axis=0):
    return tgt.clone().index_add_(axis, idx, src)
def _segment_sum(src, seg, n):
    out = torch.zeros((n,) + src.shape[1:], dtype=src.dtype)
    return out.index_add_(0, seg, src)
def _pad(x, pw):
    flat = tuple(v for pair in reversed(pw) for v in pair)
    return torch.nn.functional.pad(x, flat)

kernel_name = 'interleave_layers__sliding_block__dense_activation_squared_relu__prompt'

def setup_inputs():

    _w = (lambda a: (lambda t: t.to(torch.bfloat16) if t.is_floating_point() else t)(torch.as_tensor(a)))
    def _A_setup():
        B, S, D = 1, 2048, 640
        return {
            "x": _w((lambda *s: torch.randn(*s, dtype=torch.bfloat16) * 0.05)(B, S, D)),
            "wqkv": _w((lambda *s: torch.randn(*s, dtype=torch.bfloat16) * 0.05)(D, 3 * D)),
            "wo": _w((lambda *s: torch.randn(*s, dtype=torch.bfloat16) * 0.05)(D, D)),
        }
    _A_in = _A_setup()

    def _B_setup():
        B, S, D, F = 1, 2048, 640, 1728
        return {
            "x": _w((lambda *s: torch.randn(*s, dtype=torch.bfloat16) * 0.05)(B, S, D)),
            "w1": _w((lambda *s: torch.randn(*s, dtype=torch.bfloat16) * 0.05)(D, F)),
            "b1": _w((lambda *s: torch.randn(*s, dtype=torch.bfloat16) * 0.2)(F)),
            "w2": _w((lambda *s: torch.randn(*s, dtype=torch.bfloat16) * 0.05)(F, D)),
            "b2": _w((lambda *s: torch.randn(*s, dtype=torch.bfloat16) * 0.8)(D)),
        }
    _B_in = _B_setup()

    return {
        "A_x": _A_in["x"],
        "A_wqkv": _A_in["wqkv"],
        "A_wo": _A_in["wo"],
        "B_x": _B_in["x"],
        "B_w1": _B_in["w1"],
        "B_b1": _B_in["b1"],
        "B_w2": _B_in["w2"],
        "B_b2": _B_in["b2"],
    }

def reference(A_x, A_wqkv, A_wo, B_x, B_w1, B_b1, B_w2, B_b2):
    def _A_ref(x, wqkv, wo):
        B, S, D = x.shape
        H = 32; Dh = D // H; W = 256
        qkv = (lambda x, *d: x.permute(*d))((x @ wqkv).reshape(B, S, 3, H, Dh), 2, 0, 3, 1, 4)
        q, k, v = qkv[0], qkv[1], qkv[2]
        scores = torch.einsum("bhqd,bhkd->bhqk", q, k) * (Dh ** -0.5)
        idx = torch.arange(S)
        mask = (idx[:, None] - idx[None, :] >= 0) & (idx[:, None] - idx[None, :] < W)
        scores = torch.where(mask[None, None], scores, -1e9)
        p = _softmax(scores, axis=-1)
        o = torch.einsum("bhqk,bhkd->bhqd", p, v)
        return (lambda x, *d: x.permute(*d))(o, 0, 2, 1, 3).reshape(B, S, D) @ wo

    def _B_ref(x, w1, b1, w2, b2):
        h = torch.einsum("bsd,df->bsf", x, w1) + b1
        zero = torch.zeros_like(h)
        r = torch.where(h > zero, h, zero)
        h = r * r
        out = torch.einsum("bsf,fd->bsd", h, w2) + b2
        return out

    x = A_x
    x = x + _A_ref(_layernorm(x, axis=-1), A_wqkv, A_wo)
    x = x + _B_ref(_layernorm(x, axis=-1), B_w1, B_b1, B_w2, B_b2)
    x = x + _A_ref(_layernorm(x, axis=-1), A_wqkv, A_wo)
    x = x + _B_ref(_layernorm(x, axis=-1), B_w1, B_b1, B_w2, B_b2)
    return x
```

```python
KN = "interleave_layers__sliding_block__dense_activation_squared_relu__prompt"
PL = 32768
WS_QKV = 0x0; WS_O = 0x800000; WS_H = 0xB00000
WS_X0 = 0x1C00000; WS_X1 = 0x1200000; WS_X2 = 0x1500000; WS_X3 = 0x1800000
WS_S0 = 0x1F00000; WS_S1 = 0x1F40000; WS_S2 = 0x1F80000; WS_S3 = 0x1FC0000
WS_CS = 0x2000000
WS_SIZE = 0x4000000
SC1 = " sc1"

class Kern:
    def __init__(s, name, grid, lds, vgpr=256, sgpr=100):
        s.name = name; s.grid = grid; s.lds = lds; s.vgpr = vgpr; s.sgpr = sgpr
        s.L = []; s.n = 0
    def __call__(s, txt):
        for ln in txt.strip("\n").split("\n"):
            s.L.append("  " + ln.strip())
    def lab(s, l): s.L.append(l + ":")
    def newlab(s, p="L"):
        s.n += 1; return f"{s.name}_{p}{s.n}"
    def text(s):
        n = s.name + "_kernel"
        return f".globl {n}\n.p2align 8\n.type {n},@function\n{n}:\n" + "\n".join(s.L) + "\n"
    def desc(s):
        n = s.name + "_kernel"
        return f""".p2align 6
.amdhsa_kernel {n}
  .amdhsa_next_free_vgpr {s.vgpr}
  .amdhsa_next_free_sgpr {s.sgpr}
  .amdhsa_accum_offset {((s.vgpr + 3) // 4) * 4}
  .amdhsa_group_segment_fixed_size 0
  .amdhsa_kernarg_size 88
  .amdhsa_user_sgpr_count 2
  .amdhsa_user_sgpr_kernarg_segment_ptr 1
  .amdhsa_system_sgpr_workgroup_id_x 1
.end_amdhsa_kernel
"""
    def srd(s, d, argoff, size):
        s(f"s_load_dwordx2 s[{d}:{d+1}], s[0:1], {argoff}")
        s._srds = getattr(s, "_srds", []) + [(d, size)]
    def srd_fin(s):
        s("s_waitcnt lgkmcnt(0)")
        for d, size in s._srds:
            s(f"s_mov_b32 s{d+2}, {size}\ns_mov_b32 s{d+3}, 0x20000")
        s._srds = []

def emit_file(path, kerns, order):
    hdr = "; generated by exp/gen.py (hand-written generator)\n"
    byname = {k.name: k for k in kerns}
    for nm in order:
        k = byname[nm]
        hdr += f"; @launch kernel={k.name}_kernel grid=({k.grid},1,1) block=(512,1,1) lds={k.lds}\n"
    s = hdr + '.amdgcn_target "amdgcn-amd-amdhsa--gfx950"\n.text\n'
    for k in kerns: s += k.text()
    s += '.section .rodata,"a"\n'
    for k in kerns: s += k.desc()
    open(path, "w").write(s)

def swap_add(k, a, t):
    k(f"v_mov_b32 v{t}, v{a}\ns_nop 1\nv_permlane32_swap_b32 v{a}, v{t}\ns_nop 1\nv_add_f32 v{a}, v{a}, v{t}")

PROF = False
WS_PROF = 0x3000000
def stampc(k, idx, sreg=90):
    import g0
    if not g0.PROF: return
    k(f"s_memtime s[{sreg}:{sreg+1}]\ns_waitcnt lgkmcnt(0)\nv_writelane_b32 v63, s{sreg}, {idx}")
def stamp(k, idx, sreg=90):
    import g0
    if not g0.PROF: return
    k(f"s_memrealtime s[{sreg}:{sreg+1}]\ns_waitcnt lgkmcnt(0)\nv_writelane_b32 v63, s{sreg}, {idx}")
def stamp_flush(k, slot, wave_sreg, wavesel=0):
    import g0
    if not g0.PROF: return
    l = k.newlab("pf")
    k(f"""s_cmp_eq_u32 s{wave_sreg}, {wavesel}
    s_cbranch_scc0 {l}
    v_and_b32 v62, 63, v0
    v_lshlrev_b32 v62, 2, v62
    s_lshl_b32 s90, s2, 8
    s_add_u32 s90, s90, {WS_PROF} + {slot}*65536
    v_cmp_gt_u32 vcc, 16, v0
    s_and_saveexec_b64 s[92:93], vcc
    buffer_store_dword v63, v62, s[8:11], s90 offen
    s_mov_b64 exec, s[92:93]""")
    k.lab(l)

def PROFON():
    import g0
    return g0.PROF
```

```python
from g0 import *
class LQ:
    def __init__(s, k): s.k = k; s.n = 0; s.tag = {}
    def issue(s, txt, tag):
        s.k(txt); s.n += 1; s.tag[tag] = s.n
    def need(s, *tags):
        m = max(s.tag[t] for t in tags)
        s.k(f"s_waitcnt lgkmcnt({min(15, s.n - m)})")
def gen_att(name, slot=3):
    VB = 24576; VS = 8256
    k = Kern(name, 256, 57600, vgpr=200)
    end = name + "_end"
    k(f"s_cmp_ge_u32 s2, 256\ns_cbranch_scc1 {end}")
    k.srd(8, 80, WS_SIZE)
    k(f"""v_and_b32 v1, 63, v0
    v_lshrrev_b32 v2, 6, v0
    s_and_b32 s24, s2, 7
    s_lshr_b32 s25, s2, 3
    v_readfirstlane_b32 s28, v2
    s_lshl_b32 s24, s24, 2
    s_and_b32 s26, s25, 3
    s_add_u32 s24, s24, s26
    s_lshr_b32 s25, s25, 2
    s_and_b32 s26, s24, 1
    s_mul_i32 s27, s24, 5
    s_lshr_b32 s29, s27, 1""")
    k.srd_fin()
    stamp(k, 0)
    k(f"""s_add_u32 s30, s29, 80
    s_lshl_b32 s30, s30, 15
    s_lshl_b32 s31, s25, 12
    s_add_u32 s30, s30, s31
    s_sub_u32 s30, s30, 4096
    s_lshl_b32 s31, s28, 10
    s_add_u32 s30, s30, s31
    v_lshlrev_b32 v3, 4, v1
    v_add_u32 v3, s30, v3""")
    for p in range(3):
        k(f"s_add_u32 m0, s31, {p*8192}\ns_mov_b32 s32, {WS_QKV + p*PL}\nbuffer_load_dwordx4 v3, s[8:11], s32 offen lds")
    Q0 = 8; Q1 = 12
    k(f"""v_lshrrev_b32 v4, 5, v1
    v_and_b32 v5, 31, v1
    s_lshl_b32 s33, s25, 8
    s_lshl_b32 s34, s28, 5
    s_add_u32 s33, s33, s34
    v_add_u32 v6, s33, v5
    v_lshlrev_b32 v7, 4, v6
    v_add_u32 v16, s26, v4
    v_add_u32 v16, s29, v16
    v_lshlrev_b32 v16, 15, v16
    v_add_u32 v16, v16, v7
    s_cmp_eq_u32 s26, 1
    s_cselect_b32 s35, 0, 2
    s_add_u32 s36, s35, s29
    s_lshl_b32 s36, s36, 15
    s_add_u32 s36, s36, {WS_QKV}
    s_mov_b32 s37, {WS_QKV}
    buffer_load_dwordx4 v[{Q0}:{Q0+3}], v16, s[8:11], s37 offen
    buffer_load_dwordx4 v[{Q1}:{Q1+3}], v7, s[8:11], s36 offen""")
    for p in range(3):
        k(f"s_add_u32 m0, s31, {VB + p*VS}\ns_mov_b32 s32, {WS_QKV + (80+p)*PL}\nbuffer_load_dwordx4 v3, s[8:11], s32 offen lds")
    k(f"""v_mov_b32 v20, 0x3f803f80
    v_mov_b32 v21, 0x3f803f80
    v_mov_b32 v22, 0x3f803f80
    v_mov_b32 v23, 0x3f803f80
    v_lshlrev_b32 v17, 4, v0
    ds_write_b128 v17, v[20:23] offset:{VB + 3*VS}""")
    k(f"""s_lshl_b32 s38, s28, 9
    v_add_u32 v18, s26, v4
    v_lshlrev_b32 v18, 13, v18
    v_lshlrev_b32 v19, 4, v5
    v_add_u32 v19, s38, v19
    v_add_u32 v24, v18, v19
    s_lshl_b32 s39, s35, 13
    v_add_u32 v25, s39, v19
    v_lshrrev_b32 v18, 2, v1
    v_and_b32 v18, 3, v18
    v_lshlrev_b32 v19, 2, v4
    v_add_u32 v18, v18, v19
    v_lshlrev_b32 v18, 4, v18
    v_add_u32 v18, s38, v18
    v_lshrrev_b32 v19, 4, v1
    v_and_b32 v19, 1, v19
    v_lshlrev_b32 v19, 2, v19
    v_and_b32 v27, 3, v1
    v_add_u32 v19, v19, v27
    v_cmp_lt_u32 vcc, 4, v19
    v_add_u32 v19, s26, v19
    v_and_b32 v27, 1, v19
    v_lshrrev_b32 v19, 1, v19
    v_cndmask_b32 v19, v19, 3, vcc
    v_mul_u32_u24 v19, {VS}, v19
    v_lshlrev_b32 v27, 3, v27
    v_add_u32 v18, v18, v19
    v_add_u32 v18, v18, v27
    v_add_u32 v26, {VB}, v18""")
    k("v_lshlrev_b32 v18, 2, v4\nv_sub_u32 v18, v5, v18")
    for x in range(16):
        i, j = divmod(x, 4)
        k(f"v_cmp_gt_i32 s[{48+2*x}:{49+2*x}], {8*i+j}, v18")
    k("v_mov_b32 v19, 0xffff\nv_mov_b32 v27, 0xffff0000")
    for p in range(8):
        k(f"v_cndmask_b32 v36, 0, v19, s[{48+4*p}:{49+4*p}]\nv_cndmask_b32 v37, 0, v27, s[{50+4*p}:{51+4*p}]\nv_or_b32 v{28+p}, v36, v37")
    k(f"s_sub_u32 s40, 8, s28\ns_cmp_eq_u32 s25, 0\ns_cselect_b32 s40, s40, 0")
    stamp(k, 1)
    k("s_waitcnt vmcnt(0) lgkmcnt(0)")
    k(f"""v_cmp_eq_u32 vcc, 0, v4
    s_cmp_eq_u32 s26, 1
    s_cselect_b64 s[42:43], 0, vcc
    s_cselect_b64 s[44:45], vcc, 0
    v_cndmask_b32 v{Q1}, 0, v{Q1}, s[42:43]
    v_cndmask_b32 v{Q1+1}, 0, v{Q1+1}, s[42:43]
    v_cndmask_b32 v{Q1+2}, 0, v{Q1+2}, s[44:45]
    v_cndmask_b32 v{Q1+3}, 0, v{Q1+3}, s[44:45]
    s_barrier""")
    stamp(k, 2)
    SB = [64, 80, 96]; KF = [112, 120, 128]; VF = [136, 144, 152]; NM = 160; O = 176; PP = 40; PF = 48; M0 = 38; M1 = 39
    q = LQ(k)
    kslot = {}; nk = [0]
    def rdK(j, ps):
        sl = nk[0] % 3; nk[0] += 1; kslot[(j, ps)] = sl; f = KF[sl]
        q.issue(f"ds_read_b128 v[{f}:{f+3}], v24 offset:{512*j}", ("k", j, ps, 0))
        q.issue(f"ds_read_b128 v[{f+4}:{f+7}], v25 offset:{512*j}", ("k", j, ps, 1))
    def mmS(j, ps, buf):
        f = KF[kslot[(j, ps)]]; d = SB[buf]
        q.need(("k", j, ps, 0), ("k", j, ps, 1))
        c = "0" if ps == 1 else f"v[{NM}:{NM+15}]"
        k(f"v_mfma_f32_32x32x16_bf16 v[{d}:{d+15}], v[{f}:{f+3}], v[{Q0}:{Q0+3}], {c}")
        k(f"v_mfma_f32_32x32x16_bf16 v[{d}:{d+15}], v[{f+4}:{f+7}], v[{Q1}:{Q1+3}], v[{d}:{d+15}]")
    tails = []
    def skipper(j):
        ls = k.newlab("sk"); ln = k.newlab("nx")
        k(f"s_cmp_gt_u32 s40, {j}\ns_cbranch_scc1 {ls}")
        tails.append((ls, ln)); return ln
    def merge():
        l = k.newlab("mg")
        k(f"s_cmp_eq_u32 s25, 0\ns_cbranch_scc0 {l}")
        for x in range(16): k(f"v_mov_b32 v{SB[0]+x}, 0xff61b1e6")
        k.lab(l)
        for x in range(16):
            k(f"v_cndmask_b32 v{SB[0]+x}, v{SB[1]+x}, v{SB[0]+x}, s[{48+2*x}:{49+2*x}]")
    rdK(0, 1); rdK(8, 1); rdK(1, 1)
    mmS(0, 1, 0); mmS(8, 1, 1); rdK(2, 1); mmS(1, 1, 2)
    k("s_nop 7\ns_nop 3")
    merge()
    d = SB[0]
    k(f"v_max3_f32 v{M0}, v{d}, v{d+1}, v{d+2}\nv_max3_f32 v{M1}, v{d+3}, v{d+4}, v{d+5}")
    for p in range(3, 8):
        k(f"v_max3_f32 v{M0 + (p & 1)}, v{M0 + (p & 1)}, v{d+2*p}, v{d+2*p+1}")
    cur = 2
    for j in range(1, 8):
        nxt = 0 if cur != 0 else 1
        if j + 2 <= 7: rdK(j + 2, 1)
        if j + 1 <= 7: mmS(j + 1, 1, nxt)
        else:
            rdK(0, 2); rdK(8, 2); k("s_nop 7")
        ln = skipper(j)
        d = SB[cur]
        for p in range(8):
            k(f"v_max3_f32 v{M0 + (p & 1)}, v{M0 + (p & 1)}, v{d+2*p}, v{d+2*p+1}")
        k.lab(ln)
        cur = nxt
    k(f"""v_max_f32 v{M0}, v{M0}, v{M1}
    v_mov_b32 v{M1}, v{M0}
    s_nop 1
    v_permlane32_swap_b32 v{M0}, v{M1}
    s_nop 1
    v_max_f32 v{M0}, v{M0}, v{M1}""")
    for x in range(16): k(f"v_sub_f32 v{NM+x}, 0, v{M0}")
    stamp(k, 3)
    vslot = {}; nv = [0]
    def rdV(j):
        sl = nv[0] % 3; nv[0] += 1; vslot[j] = sl; f = VF[sl]
        for u in range(2):
            for e in range(2):
                q.issue(f"ds_read_b64_tr_b16 v[{f+4*u+2*e}:{f+4*u+2*e+1}], v26 offset:{512*j+256*u+128*e}", ("v", j, u, e))
    first = [True]
    def pv(j, P):
        f = VF[vslot[j]]
        q.need(*[("v", j, u, e) for u in range(2) for e in range(2)])
        for u in range(2):
            c = "0" if first[0] else f"v[{O}:{O+15}]"
            first[0] = False
            k(f"v_mfma_f32_32x32x16_bf16 v[{O}:{O+15}], v[{f+4*u}:{f+4*u+3}], v[{P+4*u}:{P+4*u+3}], {c}")
    def expcvt(buf):
        d = SB[buf]
        for x in range(16): k(f"v_exp_f32 v{d+x}, v{d+x}")
        for p in range(8): k(f"v_cvt_pk_bf16_f32 v{PP+p}, v{d+2*p}, v{d+2*p+1}")
    rdK(1, 2); rdV(0); rdV(8)
    k("s_nop 1")
    mmS(0, 2, 0); mmS(8, 2, 1); mmS(1, 2, 2); rdK(2, 2); rdV(1)
    k("s_nop 7\ns_nop 3")
    merge()
    expcvt(0)
    for p in range(8):
        k(f"v_and_b32 v{PF+p}, v{PP+p}, v{28+p}")
    for p in range(8):
        k(f"v_xor_b32 v{PP+p}, v{PP+p}, v{PF+p}")
    k("s_nop 1")
    pv(0, PF); pv(8, PP)
    cur = 2
    for j in range(1, 8):
        nxt = 0 if cur != 0 else 1
        if j + 1 <= 7:
            mmS(j + 1, 2, nxt)
            rdV(j + 1)
        if j + 2 <= 7: rdK(j + 2, 2)
        ln = skipper(j)
        expcvt(cur)
        k("s_nop 1")
        pv(j, PP)
        k.lab(ln)
        cur = nxt
    stamp(k, 4)
    k(f"""s_nop 7
    s_nop 7
    v_rcp_f32 v{M0}, v{O+12}
    v_add_u32 v18, s27, v4
    v_and_b32 v19, 1, v18
    v_lshrrev_b32 v18, 1, v18
    v_lshlrev_b32 v18, 15, v18
    v_lshlrev_b32 v19, 3, v19
    v_add_u32 v18, v18, v19
    v_add_u32 v18, v18, v7
    s_mov_b32 s36, {WS_O}
    s_mov_b32 s37, {WS_O + PL}
    s_mov_b32 s38, {WS_O + 2*PL}""")
    for x in range(12): k(f"v_mul_f32 v{O+x}, v{O+x}, v{M0}")
    for p in range(6): k(f"v_cvt_pk_bf16_f32 v{PP+p}, v{O+2*p}, v{O+2*p+1}")
    k(f"""buffer_store_dwordx2 v[{PP}:{PP+1}], v18, s[8:11], s36 offen{SC1}
    buffer_store_dwordx2 v[{PP+2}:{PP+3}], v18, s[8:11], s37 offen{SC1}
    v_cmp_gt_u32 vcc, 32, v1
    s_and_saveexec_b64 s[42:43], vcc
    buffer_store_dwordx2 v[{PP+4}:{PP+5}], v18, s[8:11], s38 offen{SC1}
    s_mov_b64 exec, s[42:43]""")
    stamp(k, 7)
    if PROFON(): k("s_waitcnt vmcnt(0)")
    stamp(k, 8)
    stamp_flush(k, slot, 28)
    k.lab(end)
    k("s_endpgm")
    for ls, ln in tails:
        k.lab(ls)
        k(f"s_nop 7\ns_nop 7\ns_branch {ln}")
    return k
```

```python
from g0 import *
import math
def gen_lng(name, kind, xoff, soff, slot=1):
    qkv = kind == 'qkv'
    RS = 3840 if qkv else 3456
    per = 30 if qkv else 28
    nwg = per * 8
    outoff = WS_QKV if qkv else WS_H
    csoff = WS_CS if qkv else WS_CS + 8192
    NST = 10; NS = 4; SLOT = 32768
    k = Kern(name, nwg, NS * SLOT, vgpr=256)
    end = name + "_end"
    k(f"s_cmp_ge_u32 s2, {nwg}\ns_cbranch_scc1 {end}")
    k.srd(8, 80, WS_SIZE); k.srd(12, 8 if qkv else 32, 640 * RS)
    if not qkv: k.srd(16, 40, 3456)
    k(f"""v_and_b32 v1, 63, v0
    v_lshrrev_b32 v2, 6, v0
    s_and_b32 s24, s2, 7
    s_lshr_b32 s25, s2, 3
    v_readfirstlane_b32 s28, v2
    s_lshr_b32 s26, s24, 2
    s_mul_i32 s26, s26, {per}
    s_add_u32 s26, s26, s25
    s_and_b32 s24, s24, 3
    s_lshl_b32 s24, s24, 2
    s_and_b32 s25, s26, 3
    s_add_u32 s24, s24, s25
    s_lshr_b32 s25, s26, 2""")
    k.srd_fin()
    k(f"s_cmp_ge_u32 s28, 4\ns_cbranch_scc0 {name}_cons")
    k(f"""s_sub_u32 s28, s28, 4
    s_lshl_b32 s29, s24, 11
    s_lshl_b32 s30, s28, 16
    s_add_u32 s29, s29, s30
    v_lshlrev_b32 v3, 4, v1
    v_add_u32 v4, s29, v3
    v_add_u32 v6, {PL - 2048}, v4
    v_lshrrev_b32 v8, 4, v1
    v_and_b32 v9, 15, v1
    v_lshlrev_b32 v10, 2, v8
    v_xor_b32 v9, v9, v10""")
    if not qkv:
        k("s_cmp_eq_u32 s25, 13\ns_cselect_b32 s31, 7, 15\nv_and_b32 v9, s31, v9")
    k(f"""s_lshl_b32 s31, s28, 4
    v_add_u32 v8, s31, v8
    s_mov_b32 s32, {RS}
    v_mul_lo_u32 v8, v8, s32
    v_lshlrev_b32 v9, 4, v9
    v_add_u32 v8, v8, v9
    s_lshl_b32 s31, s25, 8
    v_add_u32 v8, s31, v8
    v_add_u32 v9, {4*RS - 1024}, v8
    v_add_u32 v10, {8*RS - 2048}, v8
    v_add_u32 v11, {12*RS - 3072}, v8
    s_lshl_b32 s33, s28, 12
    s_mov_b32 s34, {xoff}
    s_mov_b32 s35, 0""")
    def issue(st):
        slot = st % NS
        k(f"s_add_u32 m0, s33, {slot*SLOT}\ns_nop 0")
        for q in range(4):
            k(f"buffer_load_dwordx4 v{4 if q < 2 else 6}, s[8:11], s34 offen offset:{1024*q} lds")
        k(f"s_add_u32 m0, s33, {slot*SLOT + 16384}\ns_add_u32 s34, s34, {8*PL}")
        for q in range(4):
            k(f"buffer_load_dwordx4 v{8+q}, s[12:15], s35 offen offset:{1024*q} lds")
        k(f"s_add_u32 s35, s35, {64*RS}")
    for st in range(NS - 1): issue(st)
    for st in range(NST):
        outst = min(NS - 2, NST - 1 - st)
        k(f"s_waitcnt vmcnt({8*outst})\ns_barrier")
        if st + NS - 1 < NST: issue(st + NS - 1)
    k("s_endpgm")
    k.lab(name + "_cons")
    stamp(k, 0)
    ACC = 64; FR = 128; CS = 160; B1 = 192; ST = 208
    k(f"""s_and_b32 s29, s28, 1
    s_lshr_b32 s30, s28, 1
    v_lshrrev_b32 v3, 5, v1
    v_and_b32 v4, 31, v1
    s_lshl_b32 s31, s24, 7
    s_lshl_b32 s32, s29, 6
    s_add_u32 s31, s31, s32
    v_add_u32 v5, s31, v4
    v_lshlrev_b32 v6, 3, v5
    v_mul_u32_u24 v7, {5*16384}, v3
    v_add_u32 v6, v6, v7""")
    for pp in range(5):
        k(f"s_mov_b32 s33, {soff + pp*16384}")
        for tt in range(2):
            r = ST + 4*pp + 2*tt
            k(f"buffer_load_dwordx2 v[{r}:{r+1}], v6, s[8:11], s33 offen offset:{256*tt}")
    k(f"""s_lshl_b32 s33, s25, 7
    s_lshl_b32 s34, s30, 6
    s_add_u32 s33, s33, s34
    v_lshlrev_b32 v7, 2, v3
    v_add_u32 v7, s33, v7
    v_lshlrev_b32 v8, 2, v7
    v_lshlrev_b32 v9, 1, v7
    s_mov_b32 s34, {csoff}""")
    for ft in range(2):
        for i in range(4):
            r = CS + 16*ft + 4*i
            k(f"buffer_load_dwordx4 v[{r}:{r+3}], v8, s[8:11], s34 offen offset:{(32*ft+8*i)*4}")
    if not qkv:
        for ft in range(2):
            for i in range(4):
                r = B1 + 8*ft + 2*i
                k(f"buffer_load_dwordx2 v[{r}:{r+1}], v9, s[16:19], 0 offen offset:{(32*ft+8*i)*2}")
    k(f"""v_lshlrev_b32 v10, 11, v3
    s_lshl_b32 s34, s29, 6
    v_add_u32 v11, s34, v4
    v_lshlrev_b32 v11, 4, v11
    v_add_u32 v10, v10, v11
    v_lshrrev_b32 v16, 2, v1
    v_and_b32 v16, 3, v16
    v_lshlrev_b32 v17, 3, v3
    v_add_u32 v17, v17, v16
    v_lshlrev_b32 v17, 8, v17
    s_lshl_b32 s34, s30, 3
    v_lshlrev_b32 v18, 2, v16
    v_xor_b32 v18, s34, v18
    v_lshrrev_b32 v19, 4, v1
    v_and_b32 v19, 1, v19
    v_lshlrev_b32 v19, 1, v19
    v_add_u32 v18, v18, v19
    v_lshrrev_b32 v19, 1, v1
    v_and_b32 v19, 1, v19
    v_add_u32 v18, v18, v19
    v_lshlrev_b32 v18, 4, v18
    v_and_b32 v19, 1, v1
    v_lshlrev_b32 v19, 3, v19
    v_add_u32 v18, v18, v19
    v_add_u32 v11, v17, v18
    v_add_u32 v11, 16384, v11
    v_xor_b32 v12, 64, v11
    v_add_u32 v13, 65536, v10
    v_add_u32 v14, 65536, v11
    v_add_u32 v15, 65536, v12""")
    def reads(gi):
        st, ks = divmod(gi, 4); slot = st % NS
        hi = slot >= 2; base = (slot & 1) * SLOT + ks * 4096
        f = FR + 16 * (gi & 1)
        aX = 13 if hi else 10; aW = (14, 15) if hi else (11, 12)
        L = []
        for ft in range(2):
            L.append(f"ds_read_b64_tr_b16 v[{f+4*ft}:{f+4*ft+1}], v{aW[ft]} offset:{base}")
            L.append(f"ds_read_b64_tr_b16 v[{f+4*ft+2}:{f+4*ft+3}], v{aW[ft]} offset:{base+1024}")
        for tt in range(2):
            L.append(f"ds_read_b128 v[{f+8+4*tt}:{f+8+4*tt+3}], v{aX} offset:{base+512*tt}")
        return [L[0], L[1], L[4], L[2], L[3], L[5]]
    stamp(k, 1)
    k("s_barrier")
    stamp(k, 2)
    stampc(k, 12)
    for l in reads(0): k(l)
    for gi in range(NST * 4):
        st, ks = divmod(gi, 4)
        f = FR + 16 * (gi & 1)
        k("s_waitcnt lgkmcnt(0)")
        if ks == 3 and st + 1 < NST: k("s_barrier")
        if gi in (3, 19): stamp(k, 3 if gi == 3 else 4)
        R = reads(gi + 1) if gi + 1 < NST * 4 else []
        ri = 0
        for mi, (ft, tt) in enumerate([(0, 0), (0, 1), (1, 0), (1, 1)]):
            a = ACC + 32 * ft + 16 * tt
            c = "0" if gi == 0 else f"v[{a}:{a+15}]"
            k(f"v_mfma_f32_32x32x16_bf16 v[{a}:{a+15}], v[{f+4*ft}:{f+4*ft+3}], v[{f+8+4*tt}:{f+8+4*tt+3}], {c}")
            for _ in range(2):
                if ri < len(R): k(R[ri]); ri += 1
    if not qkv:
        k(f"s_cmp_eq_u32 s25, 13\ns_cselect_b32 s34, s30, 0\ns_cmp_eq_u32 s34, 1\ns_cbranch_scc1 {end}")
    stamp(k, 5)
    stampc(k, 13)
    k("s_waitcnt vmcnt(0)")
    stamp(k, 6)
    for pp in range(1, 5):
        k(f"v_pk_add_f32 v[{ST}:{ST+1}], v[{ST}:{ST+1}], v[{ST+4*pp}:{ST+4*pp+1}]\nv_pk_add_f32 v[{ST+2}:{ST+3}], v[{ST+2}:{ST+3}], v[{ST+4*pp+2}:{ST+4*pp+3}]")
    for j in range(4): swap_add(k, ST + j, 20)
    sc = 20 ** -0.5 * math.log2(math.e)
    if qkv:
        k(f"s_cmp_lt_u32 s25, 5\ns_cselect_b32 s34, {f2h(sc)}, 1.0")
    k(f"s_mov_b32 s35, {f2h(1/640)}\ns_mov_b32 s36, {f2h(1e-5)}")
    for tt in range(2):
        m = 22 + 4*tt; r = 24 + 4*tt
        k(f"""v_mul_f32 v{m}, s35, v{ST+2*tt}
        v_mul_f32 v20, s35, v{ST+2*tt+1}
        v_fma_f32 v20, -v{m}, v{m}, v20
        v_add_f32 v20, s36, v20
        v_rsq_f32 v{r}, v20
        s_nop 0""")
        if qkv: k(f"v_mul_f32 v{r}, s34, v{r}")
    if not qkv:
        for ft in range(2):
            for i in range(4):
                r = B1 + 8*ft + 2*i; d = 224 + 16*ft + 4*i
                k(f"v_lshlrev_b32 v{d}, 16, v{r}\nv_and_b32 v{d+1}, 0xffff0000, v{r}\nv_lshlrev_b32 v{d+2}, 16, v{r+1}\nv_and_b32 v{d+3}, 0xffff0000, v{r+1}")
    k(f"""v_lshlrev_b32 v30, 15, v3
    v_lshlrev_b32 v31, 4, v5
    v_add_u32 v30, v30, v31
    s_lshr_b32 s37, s33, 3
    s_lshl_b32 s37, s37, 15
    s_add_u32 s37, s37, {outoff}""")
    T = 32
    n = 0
    for ft in range(2):
        for i2 in range(2):
            for tt in range(2):
                a = ACC + 32*ft + 16*tt + 8*i2; cs = CS + 16*ft + 8*i2; m = 22 + 4*tt; r = 24 + 4*tt
                t = T + 4 * (n % 4); n += 1
                for p in range(4):
                    x = a + 2*p
                    k(f"v_pk_fma_f32 v[{x}:{x+1}], v[{m}:{m+1}], v[{cs+2*p}:{cs+2*p+1}], v[{x}:{x+1}] op_sel_hi:[0,1,1] neg_lo:[1,0,0] neg_hi:[1,0,0]")
                for p in range(4):
                    x = a + 2*p
                    if qkv:
                        k(f"v_pk_mul_f32 v[{x}:{x+1}], v[{r}:{r+1}], v[{x}:{x+1}] op_sel_hi:[0,1]")
                    else:
                        b = 224 + 16*ft + 8*i2 + 2*p
                        k(f"v_pk_fma_f32 v[{x}:{x+1}], v[{r}:{r+1}], v[{x}:{x+1}], v[{b}:{b+1}] op_sel_hi:[0,1,1]")
                if not qkv:
                    for p in range(8): k(f"v_max_f32 v{a+p}, 0, v{a+p}")
                    for p in range(4):
                        x = a + 2*p
                        k(f"v_pk_mul_f32 v[{x}:{x+1}], v[{x}:{x+1}], v[{x}:{x+1}]")
                for p in range(4):
                    k(f"v_cvt_pk_bf16_f32 v{t+p}, v{a+2*p}, v{a+2*p+1}")
                k(f"s_nop 1\nv_permlane32_swap_b32 v{t}, v{t+2}\nv_permlane32_swap_b32 v{t+1}, v{t+3}")
                k(f"s_nop 0\nbuffer_store_dwordx4 v[{t}:{t+3}], v30, s[8:11], s37 offen offset:{512*tt}{SC1}")
            k(f"s_add_u32 s37, s37, {2*PL}")
    stamp(k, 7)
    if PROFON(): k("s_waitcnt vmcnt(0)")
    stamp(k, 8)
    stamp_flush(k, slot, 28)
    k.lab(end)
    k("s_endpgm")
    return k

import struct
def f2h(x):
    return "0x%08x" % struct.unpack("<I", struct.pack("<f", x))[0]
```

```python
from g0 import *
def gen_prep():
    k = Kern("prep", 256, 8192, vgpr=128)
    k("s_cmp_ge_u32 s2, 256\ns_cbranch_scc1 prep_end")
    k.srd(8, 80, WS_SIZE); k.srd(12, 0, 2048*1280); k.srd(16, 8, 640*3840); k.srd(20, 32, 640*3456)
    k.srd(24, 16, 640*1280); k.srd(28, 48, 1728*1280)
    k("v_and_b32 v1, 63, v0\nv_lshrrev_b32 v2, 6, v0")
    k.srd_fin()
    k("s_cmp_ge_u32 s2, 185\ns_cbranch_scc1 prep_pf")
    k("s_cmp_ge_u32 s2, 57\ns_cbranch_scc1 prep_x")
    k("""s_cmp_ge_u32 s2, 30
    s_cbranch_scc1 prep_cs1
    s_mov_b32 s32, 3840
    s_lshl_b32 s33, s2, 7
    s_lshl_b32 s34, s2, 8
    s_add_u32 s34, s34, %d
    s_branch prep_cs2""" % WS_CS)
    k.lab("prep_cs1")
    k("""s_mov_b32 s16, s20
    s_mov_b32 s17, s21
    s_mov_b32 s18, s22
    s_mov_b32 s32, 3456
    s_sub_u32 s35, s2, 30
    s_lshl_b32 s33, s35, 7
    s_lshl_b32 s34, s35, 8
    s_add_u32 s34, s34, %d""" % (WS_CS + 8192))
    k.lab("prep_cs2")
    k("""v_lshrrev_b32 v3, 3, v0
    v_and_b32 v4, 7, v0
    v_mul_lo_u32 v3, v3, s32
    v_lshlrev_b32 v4, 4, v4
    v_add_u32 v3, v3, v4
    v_add_u32 v3, s33, v3
    s_lshl_b32 s36, s32, 6
    s_mov_b32 s37, 0""")
    for i in range(10):
        k(f"buffer_load_dwordx4 v[{16+4*i}:{19+4*i}], v3, s[16:19], s37 offen\ns_add_u32 s37, s37, s36")
    for j in range(8): k(f"v_mov_b32 v{64+j}, 0")
    for i in range(10):
        k(f"s_waitcnt vmcnt({9-i})")
        for d in range(4):
            r = 16 + 4*i + d
            k(f"v_lshlrev_b32 v4, 16, v{r}\nv_and_b32 v5, 0xffff0000, v{r}\nv_add_f32 v{64+2*d}, v{64+2*d}, v4\nv_add_f32 v{65+2*d}, v{65+2*d}, v5")
    k("v_xor_b32 v6, 8, v1\nv_lshlrev_b32 v6, 2, v6\nv_xor_b32 v7, 16, v1\nv_lshlrev_b32 v7, 2, v7\nv_xor_b32 v8, 32, v1\nv_lshlrev_b32 v8, 2, v8")
    for a in (6, 7, 8):
        for j in range(8): k(f"ds_bpermute_b32 v{72+j}, v{a}, v{64+j}")
        k("s_waitcnt lgkmcnt(0)")
        for j in range(8): k(f"v_add_f32 v{64+j}, v{64+j}, v{72+j}")
    k("""v_lshlrev_b32 v9, 8, v2
    v_lshlrev_b32 v10, 5, v1
    v_add_u32 v9, v9, v10
    v_cmp_gt_u32 vcc, 8, v1
    s_and_saveexec_b64 s[40:41], vcc
    ds_write_b128 v9, v[64:67]
    ds_write_b128 v9, v[68:71] offset:16
    s_mov_b64 exec, s[40:41]
    s_waitcnt lgkmcnt(0)
    s_barrier
    v_cmp_gt_u32 vcc, 64, v0
    s_and_saveexec_b64 s[40:41], vcc
    s_cbranch_execz prep_end
    v_lshlrev_b32 v9, 2, v0""")
    for w in range(8): k(f"ds_read_b32 v{16+w}, v9 offset:{256*w}")
    k("s_waitcnt lgkmcnt(0)")
    for w in range(1, 8): k(f"v_add_f32 v16, v16, v{16+w}")
    k(f"buffer_store_dword v16, v9, s[8:11], s34 offen{SC1}\ns_endpgm")
    k.lab("prep_x")
    k("""s_sub_u32 s32, s2, 57
    s_lshl_b32 s32, s32, 4
    v_and_b32 v3, 7, v1
    v_and_b32 v4, 1, v2
    v_lshlrev_b32 v4, 3, v4
    v_add_u32 v3, v3, v4
    v_add_u32 v4, s32, v3
    v_lshrrev_b32 v5, 3, v1
    v_lshrrev_b32 v6, 1, v2
    v_lshlrev_b32 v6, 3, v6
    v_add_u32 v5, v5, v6
    s_mov_b32 s33, 1280
    v_mul_lo_u32 v7, v4, s33
    v_lshlrev_b32 v8, 4, v5
    v_add_u32 v7, v7, v8
    v_lshlrev_b32 v8, 15, v5
    v_lshlrev_b32 v9, 4, v4
    v_add_u32 v8, v8, v9
    v_mov_b32 v24, 0
    v_mov_b32 v25, 0
    v_mov_b32 v26, 0
    v_mov_b32 v27, 0
    v_cmp_gt_u32 vcc, 16, v5
    buffer_load_dwordx4 v[16:19], v7, s[12:15], 0 offen
    buffer_load_dwordx4 v[20:23], v7, s[12:15], 0 offen offset:512
    s_and_saveexec_b64 s[40:41], vcc
    s_cbranch_execz prep_x1
    buffer_load_dwordx4 v[24:27], v7, s[12:15], 0 offen offset:1024""")
    k.lab("prep_x1")
    k(f"""s_mov_b64 exec, s[40:41]
    s_mov_b32 s34, {WS_X0}
    s_mov_b32 s35, {WS_X0 + 32*PL}
    s_mov_b32 s36, {WS_X0 + 64*PL}
    v_mov_b32 v30, 0
    v_mov_b32 v31, 0
    s_waitcnt vmcnt(0)
    buffer_store_dwordx4 v[16:19], v8, s[8:11], s34 offen{SC1}
    buffer_store_dwordx4 v[20:23], v8, s[8:11], s35 offen{SC1}
    s_and_saveexec_b64 s[40:41], vcc
    s_cbranch_execz prep_x2
    buffer_store_dwordx4 v[24:27], v8, s[8:11], s36 offen{SC1}""")
    k.lab("prep_x2")
    k("s_mov_b64 exec, s[40:41]")
    for r in range(16, 28):
        k(f"v_lshlrev_b32 v4, 16, v{r}\nv_and_b32 v6, 0xffff0000, v{r}\nv_add_f32 v30, v30, v4\nv_fma_f32 v31, v4, v4, v31\nv_add_f32 v30, v30, v6\nv_fma_f32 v31, v6, v6, v31")
    k("v_xor_b32 v10, 8, v1\nv_lshlrev_b32 v10, 2, v10\nv_xor_b32 v11, 16, v1\nv_lshlrev_b32 v11, 2, v11\nv_xor_b32 v12, 32, v1\nv_lshlrev_b32 v12, 2, v12")
    for a in (10, 11, 12):
        k(f"ds_bpermute_b32 v32, v{a}, v30\nds_bpermute_b32 v33, v{a}, v31\ns_waitcnt lgkmcnt(0)\nv_add_f32 v30, v30, v32\nv_add_f32 v31, v31, v33")
    k("""v_lshrrev_b32 v6, 1, v2
    v_lshlrev_b32 v6, 7, v6
    v_lshlrev_b32 v9, 3, v3
    v_add_u32 v6, v6, v9
    v_cmp_gt_u32 vcc, 8, v1
    s_and_saveexec_b64 s[40:41], vcc
    ds_write_b64 v6, v[30:31]
    s_mov_b64 exec, s[40:41]
    s_waitcnt lgkmcnt(0)
    s_barrier
    v_cmp_gt_u32 vcc, 160, v0
    s_and_saveexec_b64 s[40:41], vcc
    s_cbranch_execz prep_end
    v_and_b32 v3, 15, v0
    v_lshrrev_b32 v4, 4, v0
    v_lshlrev_b32 v9, 3, v3
    ds_read_b64 v[16:17], v9
    ds_read_b64 v[18:19], v9 offset:128
    ds_read_b64 v[20:21], v9 offset:256
    ds_read_b64 v[22:23], v9 offset:384
    s_waitcnt lgkmcnt(0)
    v_add_f32 v16, v16, v18
    v_add_f32 v17, v17, v19
    v_add_f32 v20, v20, v22
    v_add_f32 v21, v21, v23
    v_add_f32 v16, v16, v20
    v_add_f32 v17, v17, v21
    v_cmp_eq_u32 vcc, 0, v4
    s_nop 1
    v_cndmask_b32 v16, 0, v16, vcc
    v_cndmask_b32 v17, 0, v17, vcc
    v_lshlrev_b32 v4, 14, v4
    v_add_u32 v3, s32, v3
    v_lshlrev_b32 v3, 3, v3
    v_add_u32 v3, v3, v4""")
    k(f"s_mov_b32 s34, {WS_S0}\nbuffer_store_dwordx2 v[16:17], v3, s[8:11], s34 offen{SC1}\ns_endpgm")
    k.lab("prep_pf")
    k("""s_sub_u32 s32, s2, 185
    s_lshl_b32 s32, s32, 13
    v_lshlrev_b32 v3, 4, v0
    v_add_u32 v3, s32, v3
    s_mov_b32 s33, 0""")
    k("v_mov_b32 v4, v3")
    for i in range(2):
        k(f"buffer_load_dwordx4 v[{16+4*i}:{19+4*i}], v4, s[24:27], 0 offen\nv_add_u32 v4, 581632, v4")
    for i in range(4):
        k(f"buffer_load_dwordx4 v[{32+4*i}:{35+4*i}], v3, s[28:31], 0 offen\nv_add_u32 v3, 581632, v3")
    k("s_waitcnt vmcnt(0)")
    k.lab("prep_end")
    k("s_endpgm")
    return k
```

```python
from g0 import *
def gen_rg(name, kind, xoff, resoff, outoff, soff, slot=2):
    wo = kind == 'wo'; fin = kind == 'w2f'
    NST = 10 if wo else 27
    NS = 6; SLOT = 20480; RS = 1280
    nwg = 224
    k = Kern(name, nwg, NS * SLOT, vgpr=128)
    end = name + "_end"
    k(f"s_cmp_ge_u32 s2, {nwg}\ns_cbranch_scc1 {end}")
    k.srd(8, 80, WS_SIZE); k.srd(12, 16 if wo else 48, (640 if wo else 1728) * 1280)
    if not wo: k.srd(16, 56, 1280)
    if fin: k.srd(20, 64, 2048 * 1280)
    k(f"""v_and_b32 v1, 63, v0
    v_lshrrev_b32 v2, 6, v0
    s_and_b32 s24, s2, 7
    s_lshr_b32 s25, s2, 3
    v_readfirstlane_b32 s28, v2
    s_mul_i32 s26, s24, 28
    s_add_u32 s26, s26, s25
    s_cmp_ge_u32 s26, 220
    s_cbranch_scc1 {end}
    s_mul_i32 s24, s26, 6554
    s_lshr_b32 s24, s24, 16
    s_mul_i32 s25, s24, 10
    s_sub_u32 s25, s26, s25""")
    k.srd_fin()
    k(f"s_cmp_ge_u32 s28, 4\ns_cbranch_scc0 {name}_cons")
    k(f"""s_sub_u32 s28, s28, 4
    s_mul_i32 s29, s28, 192
    s_mul_i32 s30, s24, 96
    s_mov_b32 s31, 683
    s_mov_b32 s32, 96""")
    for q in range(3):
        k(f"""v_add_u32 v3, s29, v1
        v_add_u32 v3, {64*q}, v3
        v_mul_lo_u32 v4, v3, s31
        v_lshrrev_b32 v4, 16, v4
        v_mul_lo_u32 v5, v4, s32
        v_sub_u32 v5, v3, v5
        v_add_u32 v5, s30, v5
        v_lshlrev_b32 v5, 4, v5
        v_lshlrev_b32 v4, 15, v4
        v_add_u32 v5, v5, v4
        v_subrev_u32 v{8+q}, {1024*q}, v5""")
    k(f"""v_lshrrev_b32 v3, 3, v1
    s_lshl_b32 s31, s28, 4
    v_add_u32 v3, s31, v3
    s_mov_b32 s32, {RS}
    v_mul_lo_u32 v3, v3, s32
    v_and_b32 v4, 7, v1
    v_lshrrev_b32 v5, 4, v1
    v_and_b32 v5, 1, v5
    v_lshlrev_b32 v5, 2, v5
    v_xor_b32 v4, v4, v5
    v_lshlrev_b32 v4, 4, v4
    v_add_u32 v3, v3, v4
    s_lshl_b32 s31, s25, 7
    v_add_u32 v11, s31, v3
    v_add_u32 v12, {8*RS - 1024}, v11
    s_mul_i32 s33, s28, 3072
    s_lshl_b32 s36, s28, 11
    s_add_u32 s36, s36, 12288
    s_mov_b32 s34, {xoff}
    s_mov_b32 s35, 0""")
    def issue(st):
        sl = st % NS
        k(f"s_add_u32 m0, s33, {sl*SLOT}\ns_nop 0")
        for q in range(3):
            k(f"buffer_load_dwordx4 v{8+q}, s[8:11], s34 offen offset:{1024*q} lds")
        k(f"s_add_u32 m0, s36, {sl*SLOT}\ns_add_u32 s34, s34, {8*PL}")
        for q in range(2):
            k(f"buffer_load_dwordx4 v{11+q}, s[12:15], s35 offen offset:{1024*q} lds")
        k(f"s_add_u32 s35, s35, {64*RS}")
    for st in range(NS - 1): issue(st)
    for st in range(NST):
        outst = min(NS - 2, NST - 1 - st)
        k(f"s_waitcnt vmcnt({5*outst})\ns_barrier")
        if st + NS - 1 < NST: issue(st + NS - 1)
    k("s_endpgm")
    k.lab(name + "_cons")
    k(f"s_cmp_eq_u32 s28, 3\ns_cbranch_scc1 {end}")
    stamp(k, 0)
    ACC = 32; FR = 64; RES = 16; B2 = 112
    k(f"""v_lshrrev_b32 v3, 5, v1
    v_and_b32 v4, 31, v1
    s_mul_i32 s31, s24, 96
    s_lshl_b32 s32, s28, 5
    s_add_u32 s31, s31, s32
    v_add_u32 v5, s31, v4
    v_lshlrev_b32 v6, 4, v5
    v_lshlrev_b32 v7, 3, v3
    v_add_u32 v6, v6, v7
    s_lshl_b32 s33, s25, 18
    s_add_u32 s33, s33, {resoff}""")
    k(f"s_cmp_ge_u32 s31, 2048\ns_cselect_b32 s37, 1, 0")
    for ft in range(2):
        for i in range(4):
            r = RES + 8*ft + 2*i
            k(f"buffer_load_dwordx2 v[{r}:{r+1}], v6, s[8:11], s33 offen\ns_add_u32 s33, s33, {PL}")
    if not wo:
        k(f"v_lshlrev_b32 v7, 3, v3\ns_lshl_b32 s34, s25, 7\nv_add_u32 v7, s34, v7")
        for ft in range(2):
            for i in range(4):
                r = B2 + 8*ft + 2*i
                k(f"buffer_load_dwordx2 v[{r}:{r+1}], v7, s[16:19], 0 offen offset:{(32*ft+8*i)*2}")
    k(f"""v_mul_u32_u24 v8, 1536, v3
    s_lshl_b32 s34, s28, 5
    v_add_u32 v9, s34, v4
    v_lshlrev_b32 v9, 4, v9
    v_add_u32 v8, v8, v9
    v_lshrrev_b32 v14, 2, v1
    v_and_b32 v14, 3, v14
    v_lshlrev_b32 v15, 3, v3
    v_add_u32 v15, v15, v14
    v_lshlrev_b32 v15, 7, v15
    v_lshrrev_b32 v14, 1, v14
    v_lshlrev_b32 v14, 2, v14
    v_lshrrev_b32 v9, 4, v1
    v_and_b32 v9, 1, v9
    v_lshlrev_b32 v9, 1, v9
    v_add_u32 v14, v14, v9
    v_lshrrev_b32 v9, 1, v1
    v_and_b32 v9, 1, v9
    v_add_u32 v14, v14, v9
    v_lshlrev_b32 v14, 4, v14
    v_and_b32 v9, 1, v1
    v_lshlrev_b32 v9, 3, v9
    v_add_u32 v14, v14, v9
    v_add_u32 v9, v15, v14
    v_add_u32 v9, 12288, v9
    v_xor_b32 v10, 64, v9
    v_add_u32 v11, {3*SLOT}, v8
    v_add_u32 v12, {3*SLOT}, v9
    v_add_u32 v13, {3*SLOT}, v10""")
    def reads(gi):
        st, hf = divmod(gi, 2); sl = st % NS
        hi = sl >= 3; base = (sl % 3) * SLOT
        f = FR + 24 * (gi & 1)
        aX = 11 if hi else 8; aW = (12, 13) if hi else (9, 10)
        L = []
        for kk in range(2):
            ks = 2*hf + kk; ff = f + 12*kk
            L.append(f"ds_read_b64_tr_b16 v[{ff}:{ff+1}], v{aW[0]} offset:{base+ks*2048}")
            L.append(f"ds_read_b64_tr_b16 v[{ff+2}:{ff+3}], v{aW[0]} offset:{base+ks*2048+512}")
            L.append(f"ds_read_b128 v[{ff+8}:{ff+11}], v{aX} offset:{base+ks*3072}")
            L.append(f"ds_read_b64_tr_b16 v[{ff+4}:{ff+5}], v{aW[1]} offset:{base+ks*2048}")
            L.append(f"ds_read_b64_tr_b16 v[{ff+6}:{ff+7}], v{aW[1]} offset:{base+ks*2048+512}")
        return L
    stamp(k, 1)
    k("s_barrier")
    stamp(k, 2)
    for l in reads(0): k(l)
    for gi in range(NST * 2):
        st, hf = divmod(gi, 2)
        f = FR + 24 * (gi & 1)
        k("s_waitcnt lgkmcnt(0)")
        if hf == 1 and st + 1 < NST: k("s_barrier")
        R = reads(gi + 1) if gi + 1 < NST * 2 else []
        ri = 0
        for mi, (kk, ft) in enumerate([(0, 0), (0, 1), (1, 0), (1, 1)]):
            a = ACC + 16 * ft; ff = f + 12*kk
            c = "0" if (gi == 0 and kk == 0) else f"v[{a}:{a+15}]"
            k(f"v_mfma_f32_32x32x16_bf16 v[{a}:{a+15}], v[{ff+4*ft}:{ff+4*ft+3}], v[{ff+8}:{ff+11}], {c}")
            for _ in range(3):
                if ri < len(R): k(R[ri]); ri += 1
    stamp(k, 5)
    k(f"s_cmp_eq_u32 s37, 1\ns_cbranch_scc1 {end}")
    k("s_waitcnt vmcnt(0)\ns_nop 7\ns_nop 3")
    stamp(k, 6)
    T = 64
    for ft in range(2):
        for i in range(4):
            r = RES + 8*ft + 2*i; a = ACC + 16*ft + 4*i; t = T + 4*(i & 1)
            k(f"""v_lshlrev_b32 v{t}, 16, v{r}
            v_and_b32 v{t+1}, 0xffff0000, v{r}
            v_lshlrev_b32 v{t+2}, 16, v{r+1}
            v_and_b32 v{t+3}, 0xffff0000, v{r+1}
            v_pk_add_f32 v[{a}:{a+1}], v[{a}:{a+1}], v[{t}:{t+1}]
            v_pk_add_f32 v[{a+2}:{a+3}], v[{a+2}:{a+3}], v[{t+2}:{t+3}]""")
            if not wo:
                b = B2 + 8*ft + 2*i; t = T + 8 + 4*(i & 1)
                k(f"""v_lshlrev_b32 v{t}, 16, v{b}
                v_and_b32 v{t+1}, 0xffff0000, v{b}
                v_lshlrev_b32 v{t+2}, 16, v{b+1}
                v_and_b32 v{t+3}, 0xffff0000, v{b+1}
                v_pk_add_f32 v[{a}:{a+1}], v[{a}:{a+1}], v[{t}:{t+1}]
                v_pk_add_f32 v[{a+2}:{a+3}], v[{a+2}:{a+3}], v[{t+2}:{t+3}]""")
    if fin:
        k(f"""s_mov_b32 s34, 1280
        v_mul_lo_u32 v14, v5, s34
        v_lshlrev_b32 v15, 4, v3
        v_add_u32 v14, v14, v15
        s_lshl_b32 s34, s25, 7""")
    else:
        k(f"""v_lshlrev_b32 v14, 15, v3
        v_lshlrev_b32 v15, 4, v5
        v_add_u32 v14, v14, v15
        s_lshl_b32 s34, s25, 18
        s_add_u32 s34, s34, {outoff}""")
    n = 0
    for ft in range(2):
        for i2 in range(2):
            a = ACC + 16*ft + 8*i2; t = T + 16 + 4*n; n += 1
            for p in range(4):
                k(f"v_cvt_pk_bf16_f32 v{t+p}, v{a+2*p}, v{a+2*p+1}")
            k(f"s_nop 1\nv_permlane32_swap_b32 v{t}, v{t+2}\nv_permlane32_swap_b32 v{t+1}, v{t+3}\ns_nop 0")
            if fin:
                k(f"buffer_store_dwordx4 v[{t}:{t+3}], v14, s[20:23], s34 offen offset:{(32*ft+16*i2)*2}")
            else:
                k(f"buffer_store_dwordx4 v[{t}:{t+3}], v14, s[8:11], s34 offen{SC1}\ns_add_u32 s34, s34, {2*PL}")
    if not fin:
        k(f"v_pk_add_f32 v[100:101], v[{ACC}:{ACC+1}], v[{ACC+2}:{ACC+3}]\nv_pk_mul_f32 v[102:103], v[{ACC}:{ACC+1}], v[{ACC}:{ACC+1}]\nv_pk_fma_f32 v[102:103], v[{ACC+2}:{ACC+3}], v[{ACC+2}:{ACC+3}], v[102:103]")
        for p in range(2, 16):
            x = ACC + 2*p
            k(f"v_pk_add_f32 v[100:101], v[100:101], v[{x}:{x+1}]\nv_pk_fma_f32 v[102:103], v[{x}:{x+1}], v[{x}:{x+1}], v[102:103]")
        k("v_add_f32 v100, v100, v101\nv_add_f32 v101, v102, v103")
        swap_add(k, 100, 104); swap_add(k, 101, 104)
        k(f"""v_lshlrev_b32 v15, 3, v4
        s_lshl_b32 s35, s31, 3
        s_lshl_b32 s36, s25, 14
        s_add_u32 s35, s35, s36
        s_add_u32 s35, s35, {soff}
        v_cmp_gt_u32 vcc, 32, v1
        s_and_saveexec_b64 s[40:41], vcc
        buffer_store_dwordx2 v[100:101], v15, s[8:11], s35 offen{SC1}
        s_mov_b64 exec, s[40:41]""")
    stamp(k, 7)
    if PROFON():
        k("s_waitcnt vmcnt(0)")
    stamp(k, 8)
    stamp_flush(k, slot, 28)
    k.lab(end)
    k("s_endpgm")
    return k
```

```python
import sys
sys.path.insert(0, "exp")
from g0 import *
import g_prep, g_lng
def build(path, order=None):
    ks = [g_prep.gen_prep(), g_lng.gen_lng("qkva", "qkv", WS_X0, WS_S0)]
    names = [k.name for k in ks]
    try:
        import g_att, g_rg
        ks.append(g_att.gen_att("att"))
        ks.append(g_rg.gen_rg("woa", "wo", WS_O, WS_X0, WS_X1, WS_S1))
        ks.append(g_lng.gen_lng("w1a", "w1", WS_X1, WS_S1))
        ks.append(g_rg.gen_rg("w2a", "w2", WS_H, WS_X1, WS_X2, WS_S2))
        ks.append(g_lng.gen_lng("qkvb", "qkv", WS_X2, WS_S2))
        ks.append(g_rg.gen_rg("wob", "wo", WS_O, WS_X2, WS_X3, WS_S3))
        ks.append(g_lng.gen_lng("w1b", "w1", WS_X3, WS_S3))
        ks.append(g_rg.gen_rg("w2b", "w2f", WS_H, WS_X3, None, None))
        order = order or ["prep", "qkva", "att", "woa", "w1a", "w2a", "qkvb", "att", "wob", "w1b", "w2b"]
    except ImportError as e:
        print("partial:", e)
        order = order or names
    emit_file(path, ks, order)
if __name__ == "__main__":
    import g0
    g0.PROF = len(sys.argv) > 2 and sys.argv[2] == "prof"
    import os
    o = os.environ.get("ORDER")
    build(sys.argv[1] if len(sys.argv) > 1 else "k.s", o.split(",") if o else None)
```

```python
KN = "interleave_layers__sliding_block__dense_activation_squared_relu__prompt"
PL = 32768
LSTR = 0x1800000
WS_QKV = 0x0; WS_O = 0x780000; WS_H = 0xA00000; WS_X1 = 0x10C0000; WS_XIN = 0x1340000
WS_S1 = 0x15C0000; WS_SIN = 0x15E8000
WS_CS = 0x1700000
WS_CNT = 0x1710000
CQ = 0; CA = 16; CW = 32; CH = 64; CX = 96
WS_X0 = WS_XIN; WS_S0 = WS_SIN
WS_SIZE = 0x6000000
SC1 = " sc1"

class Kern:
    def __init__(s, name, grid, lds, vgpr=256, sgpr=100):
        s.name = name; s.grid = grid; s.lds = lds; s.vgpr = vgpr; s.sgpr = sgpr
        s.L = []; s.n = 0
    def __call__(s, txt):
        for ln in txt.strip("\n").split("\n"):
            s.L.append("  " + ln.strip())
    def lab(s, l): s.L.append(l + ":")
    def newlab(s, p="L"):
        s.n += 1; return f"{s.name}_{p}{s.n}"
    def text(s):
        n = s.name + "_kernel"
        return f".globl {n}\n.p2align 8\n.type {n},@function\n{n}:\n" + "\n".join(s.L) + "\n"
    def desc(s):
        n = s.name + "_kernel"
        return f""".p2align 6
.amdhsa_kernel {n}
  .amdhsa_next_free_vgpr {s.vgpr}
  .amdhsa_next_free_sgpr {s.sgpr}
  .amdhsa_accum_offset {((s.vgpr + 3) // 4) * 4}
  .amdhsa_group_segment_fixed_size 0
  .amdhsa_kernarg_size 88
  .amdhsa_user_sgpr_count 2
  .amdhsa_user_sgpr_kernarg_segment_ptr 1
  .amdhsa_system_sgpr_workgroup_id_x 1
.end_amdhsa_kernel
"""
    def srd(s, d, argoff, size):
        s(f"s_load_dwordx2 s[{d}:{d+1}], s[0:1], {argoff}")
        s._srds = getattr(s, "_srds", []) + [(d, size)]
    def srd_fin(s):
        s("s_waitcnt lgkmcnt(0)")
        for d, size in s._srds:
            s(f"s_mov_b32 s{d+2}, {size}\ns_mov_b32 s{d+3}, 0x20000")
        s._srds = []

def emit_file(path, kerns, order):
    hdr = "; generated by exp/gen.py (hand-written generator)\n"
    byname = {k.name: k for k in kerns}
    for nm in order:
        k = byname[nm]
        hdr += f"; @launch kernel={k.name}_kernel grid=({k.grid},1,1) block=(512,1,1) lds={k.lds}\n"
    s = hdr + '.amdgcn_target "amdgcn-amd-amdhsa--gfx950"\n.text\n'
    for k in kerns: s += k.text()
    s += '.section .rodata,"a"\n'
    for k in kerns: s += k.desc()
    open(path, "w").write(s)

def swap_add(k, a, t):
    k(f"v_mov_b32 v{t}, v{a}\ns_nop 1\nv_permlane32_swap_b32 v{a}, v{t}\ns_nop 1\nv_add_f32 v{a}, v{a}, v{t}")

PROF = False
WS_PROF = 0x5000000
def stampc(k, idx, sreg=82):
    import g0
    if not g0.PROF: return
    k(f"s_memtime s[{sreg}:{sreg+1}]\ns_waitcnt lgkmcnt(0)\nv_writelane_b32 v59, s{sreg}, {idx}")
def stamp(k, idx, sreg=82):
    import g0
    if not g0.PROF: return
    k(f"s_memrealtime s[{sreg}:{sreg+1}]\ns_waitcnt lgkmcnt(0)\nv_writelane_b32 v59, s{sreg}, {idx}")
def stamp_flush(k, slot, wave_sreg, wavesel=0):
    import g0
    if not g0.PROF: return
    l = k.newlab("pf")
    k(f"""s_cmp_eq_u32 s{wave_sreg}, {wavesel}
    s_cbranch_scc0 {l}
    v_and_b32 v58, 63, v0
    v_lshlrev_b32 v58, 2, v58
    s_lshl_b32 s82, s2, 8
    s_add_u32 s82, s82, {WS_PROF + slot*65536}
    v_cmp_gt_u32 vcc, 16, v0
    s_and_saveexec_b64 s[44:45], vcc
    buffer_store_dword v59, v58, s[8:11], s82 offen
    s_mov_b64 exec, s[44:45]""")
    k.lab(l)

def PROFON():
    import g0
    return g0.PROF

SID = 2; SWAVE = 3; SL = 5
R_WS = 8; R_WQ = 12; R_WO = 16; R_W1 = 20; R_W2 = 84; R_B1 = 88; R_B2 = 92; R_OUT = 96
def poll(k, first, last, cbase, expect, tag):
    lw = k.newlab("pw"); lp = k.newlab("pl")
    k(f"""s_cmp_eq_u32 s{SWAVE}, 0
    s_cbranch_scc0 {lw}
    v_and_b32 v60, 63, v0
    v_add_u32 v60, s{first}, v60
    v_min_u32 v60, s{last}, v60
    v_lshlrev_b32 v60, 7, v60
    s_add_u32 s46, s{SL}, {WS_CNT + cbase*128}
    s_mov_b32 s47, 0""")
    k.lab(lp)
    k(f"""buffer_load_dword v61, v60, s[{R_WS}:{R_WS+3}], s46 offen sc1
    s_add_u32 s47, s47, 1
    s_waitcnt vmcnt(0)
    v_cmp_gt_u32 vcc, {expect}, v61
    s_cmp_ge_u32 s47, 0x40000
    s_cbranch_scc1 {lw}
    s_cbranch_vccz {lw}
    s_sleep 1
    s_branch {lp}""")
    k.lab(lw)
    k("s_barrier")
def arrive(k, idx, cbase, nextlayer=False):
    l = k.newlab("ar")
    k(f"""s_waitcnt vmcnt(0)
    s_barrier
    s_cmp_eq_u32 s{SWAVE}, 0
    s_cbranch_scc0 {l}
    s_lshl_b32 s46, s{idx}, 7
    s_add_u32 s46, s46, s{SL}
    s_add_u32 s46, s46, {WS_CNT + cbase*128 + (LSTR if nextlayer else 0)}
    v_mov_b32 v60, 0
    v_mov_b32 v61, 1
    s_mov_b64 s[44:45], exec
    s_mov_b64 exec, 1
    buffer_atomic_add v61, v60, s[{R_WS}:{R_WS+3}], s46 offen sc1
    s_mov_b64 exec, s[44:45]""")
    k.lab(l)
```

```python
from g0 import *
class LQ:
    def __init__(s, k): s.k = k; s.n = 0; s.tag = {}
    def issue(s, txt, tag):
        s.k(txt); s.n += 1; s.tag[tag] = s.n
    def need(s, *tags):
        m = max(s.tag[t] for t in tags)
        s.k(f"s_waitcnt lgkmcnt({min(15, s.n - m)})")
def emit_att(k, slot=3):
    KS = 6144; VB = 5*KS; VS = 6208
    name = k.newlab("att")
    k(f"""v_and_b32 v1, 63, v0
    s_and_b32 s24, s2, 7
    s_lshr_b32 s25, s2, 3
    s_lshl_b32 s24, s24, 1
    s_and_b32 s26, s25, 1
    s_add_u32 s24, s24, s26
    s_lshr_b32 s25, s25, 1
    s_sub_u32 s26, s25, 2
    s_max_i32 s26, s26, 0
    s_mov_b32 s27, s25""")
    stamp(k, 0)
    poll(k, 26, 27, CQ, 15, name)
    stamp(k, 1)
    k(f"""s_lshr_b32 s26, s3, 2
    s_and_b32 s28, s3, 3
    s_mul_i32 s29, s24, 5
    s_lshl_b32 s27, s29, 1
    s_mul_i32 s30, s26, 5
    s_add_u32 s27, s27, s30""")
    ld = k.newlab("ld")
    k(f"""s_cmp_ge_u32 s3, 6
    s_cbranch_scc1 {ld}
    s_lshl_b32 s30, s25, 7
    s_lshl_b32 s31, s3, 6
    s_add_u32 s30, s30, s31
    s_sub_u32 s30, s30, 256
    s_max_i32 s30, s30, 0
    s_lshl_b32 s30, s30, 4
    s_add_u32 s31, s29, 80
    s_lshl_b32 s31, s31, 15
    s_add_u32 s30, s30, s31
    v_lshlrev_b32 v3, 4, v1
    v_add_u32 v3, s30, v3
    s_lshl_b32 s31, s3, 10
    s_add_u32 s32, s5, {WS_QKV}""")
    for p in range(5):
        k(f"s_add_u32 m0, s31, {p*KS}\ns_nop 0\nbuffer_load_dwordx4 v3, s[8:11], s32 offen lds\ns_add_u32 s32, s32, {PL}")
    k(f"s_add_u32 s32, s32, {75*PL}")
    for p in range(5):
        k(f"s_add_u32 m0, s31, {VB + p*VS}\ns_nop 0\nbuffer_load_dwordx4 v3, s[8:11], s32 offen lds\ns_add_u32 s32, s32, {PL}")
    k.lab(ld)
    Q0 = 8; Q1 = 12
    k(f"""v_lshrrev_b32 v4, 5, v1
    v_and_b32 v5, 31, v1
    s_lshl_b32 s33, s25, 7
    s_lshl_b32 s34, s28, 5
    s_add_u32 s33, s33, s34
    v_add_u32 v6, s33, v5
    v_lshlrev_b32 v7, 4, v6
    s_mul_i32 s34, s26, 3
    s_add_u32 s36, s34, s29
    v_add_u32 v16, s36, v4
    v_lshlrev_b32 v16, 15, v16
    v_add_u32 v16, v16, v7
    s_add_u32 s36, s29, 2
    s_lshl_b32 s36, s36, 15
    s_add_u32 s37, s5, {WS_QKV}
    s_add_u32 s36, s36, s37
    buffer_load_dwordx4 v[{Q0}:{Q0+3}], v16, s[8:11], s37 offen
    buffer_load_dwordx4 v[{Q1}:{Q1+3}], v7, s[8:11], s36 offen""")
    k(f"""v_mov_b32 v20, 0x3f803f80
    v_mov_b32 v21, 0x3f803f80
    v_mov_b32 v22, 0x3f803f80
    v_mov_b32 v23, 0x3f803f80
    v_lshlrev_b32 v17, 4, v0
    v_min_u32 v17, {6144-16}, v17
    ds_write_b128 v17, v[20:23] offset:{VB + 5*VS}""")
    k(f"""s_lshl_b32 s38, s28, 9
    v_add_u32 v18, s34, v4
    v_mul_u32_u24 v18, {KS}, v18
    v_lshlrev_b32 v19, 4, v5
    v_add_u32 v19, s38, v19
    v_add_u32 v24, v18, v19
    v_add_u32 v25, {2*KS}, v19
    v_lshrrev_b32 v18, 2, v1
    v_and_b32 v18, 3, v18
    v_lshlrev_b32 v19, 2, v4
    v_add_u32 v18, v18, v19
    v_lshlrev_b32 v18, 4, v18
    v_add_u32 v18, s38, v18
    v_lshrrev_b32 v19, 4, v1
    v_and_b32 v19, 1, v19
    v_lshlrev_b32 v19, 2, v19
    v_and_b32 v27, 3, v1
    v_add_u32 v19, v19, v27
    v_cmp_lt_u32 vcc, 4, v19
    s_mul_i32 s39, s26, 5
    v_add_u32 v19, s39, v19
    v_and_b32 v27, 1, v19
    v_lshrrev_b32 v19, 1, v19
    v_cndmask_b32 v19, v19, 5, vcc
    v_mul_u32_u24 v19, {VS}, v19
    v_lshlrev_b32 v27, 3, v27
    v_add_u32 v18, v18, v19
    v_add_u32 v18, v18, v27
    v_add_u32 v26, {VB}, v18""")
    k("v_lshlrev_b32 v18, 2, v4\nv_sub_u32 v18, v5, v18")
    for x in range(16):
        i, j = divmod(x, 4)
        k(f"v_cmp_gt_i32 s[{48+2*x}:{49+2*x}], {8*i+j}, v18")
    k("v_mov_b32 v19, 0xffff\nv_mov_b32 v27, 0xffff0000")
    for p in range(8):
        k(f"v_cndmask_b32 v36, 0, v19, s[{48+4*p}:{49+4*p}]\nv_cndmask_b32 v37, 0, v27, s[{50+4*p}:{51+4*p}]\nv_or_b32 v{28+p}, v36, v37")
    k(f"s_lshl_b32 s40, s25, 2\ns_add_u32 s40, s40, s28\ns_sub_u32 s40, 8, s40\ns_max_i32 s40, s40, 0")
    k("s_waitcnt vmcnt(0) lgkmcnt(0)")
    k(f"""v_cmp_eq_u32 vcc, 0, v4
    s_cmp_eq_u32 s26, 1
    s_cselect_b64 s[42:43], 0, vcc
    s_cselect_b64 s[44:45], vcc, 0
    v_cndmask_b32 v{Q1}, 0, v{Q1}, s[42:43]
    v_cndmask_b32 v{Q1+1}, 0, v{Q1+1}, s[42:43]
    v_cndmask_b32 v{Q1+2}, 0, v{Q1+2}, s[44:45]
    v_cndmask_b32 v{Q1+3}, 0, v{Q1+3}, s[44:45]
    s_barrier""")
    stamp(k, 2)
    SB = [64, 80, 96]; KF = [112, 120, 128]; VF = [136, 144, 152]; NM = 160; O = 176; PP = 40; PF = 48; M0 = 38; M1 = 39
    q = LQ(k)
    kslot = {}; nk = [0]
    def rdK(j, ps):
        sl = nk[0] % 3; nk[0] += 1; kslot[(j, ps)] = sl; f = KF[sl]
        q.issue(f"ds_read_b128 v[{f}:{f+3}], v24 offset:{512*j}", ("k", j, ps, 0))
        q.issue(f"ds_read_b128 v[{f+4}:{f+7}], v25 offset:{512*j}", ("k", j, ps, 1))
    def mmS(j, ps, buf):
        f = KF[kslot[(j, ps)]]; d = SB[buf]
        q.need(("k", j, ps, 0), ("k", j, ps, 1))
        c = "0" if ps == 1 else f"v[{NM}:{NM+15}]"
        k(f"v_mfma_f32_32x32x16_bf16 v[{d}:{d+15}], v[{f}:{f+3}], v[{Q0}:{Q0+3}], {c}")
        k(f"v_mfma_f32_32x32x16_bf16 v[{d}:{d+15}], v[{f+4}:{f+7}], v[{Q1}:{Q1+3}], v[{d}:{d+15}]")
    tails = []
    def skipper(j):
        ls = k.newlab("sk"); ln = k.newlab("nx")
        k(f"s_cmp_gt_u32 s40, {j}\ns_cbranch_scc1 {ls}")
        tails.append((ls, ln)); return ln
    def merge():
        l = k.newlab("mg")
        k(f"s_cmp_eq_u32 s40, 0\ns_cbranch_scc1 {l}")
        for x in range(16): k(f"v_mov_b32 v{SB[0]+x}, 0xff61b1e6")
        k.lab(l)
        for x in range(16):
            k(f"v_cndmask_b32 v{SB[0]+x}, v{SB[1]+x}, v{SB[0]+x}, s[{48+2*x}:{49+2*x}]")
    rdK(0, 1); rdK(8, 1); rdK(1, 1)
    mmS(0, 1, 0); mmS(8, 1, 1); rdK(2, 1); mmS(1, 1, 2)
    k("s_nop 7\ns_nop 3")
    merge()
    d = SB[0]
    k(f"v_max3_f32 v{M0}, v{d}, v{d+1}, v{d+2}\nv_max3_f32 v{M1}, v{d+3}, v{d+4}, v{d+5}")
    for p in range(3, 8):
        k(f"v_max3_f32 v{M0 + (p & 1)}, v{M0 + (p & 1)}, v{d+2*p}, v{d+2*p+1}")
    cur = 2
    for j in range(1, 8):
        nxt = 0 if cur != 0 else 1
        if j + 2 <= 7: rdK(j + 2, 1)
        if j + 1 <= 7: mmS(j + 1, 1, nxt)
        else:
            rdK(0, 2); rdK(8, 2); k("s_nop 7")
        ln = skipper(j)
        d = SB[cur]
        for p in range(8):
            k(f"v_max3_f32 v{M0 + (p & 1)}, v{M0 + (p & 1)}, v{d+2*p}, v{d+2*p+1}")
        k.lab(ln)
        cur = nxt
    k(f"""v_max_f32 v{M0}, v{M0}, v{M1}
    v_mov_b32 v{M1}, v{M0}
    s_nop 1
    v_permlane32_swap_b32 v{M0}, v{M1}
    s_nop 1
    v_max_f32 v{M0}, v{M0}, v{M1}""")
    for x in range(16): k(f"v_sub_f32 v{NM+x}, 0, v{M0}")
    stamp(k, 3)
    vslot = {}; nv = [0]
    def rdV(j):
        sl = nv[0] % 3; nv[0] += 1; vslot[j] = sl; f = VF[sl]
        for u in range(2):
            for e in range(2):
                q.issue(f"ds_read_b64_tr_b16 v[{f+4*u+2*e}:{f+4*u+2*e+1}], v26 offset:{512*j+256*u+128*e}", ("v", j, u, e))
    first = [True]
    def pv(j, P):
        f = VF[vslot[j]]
        q.need(*[("v", j, u, e) for u in range(2) for e in range(2)])
        for u in range(2):
            c = "0" if first[0] else f"v[{O}:{O+15}]"
            first[0] = False
            k(f"v_mfma_f32_32x32x16_bf16 v[{O}:{O+15}], v[{f+4*u}:{f+4*u+3}], v[{P+4*u}:{P+4*u+3}], {c}")
    def expcvt(buf):
        d = SB[buf]
        for x in range(16): k(f"v_exp_f32 v{d+x}, v{d+x}")
        for p in range(8): k(f"v_cvt_pk_bf16_f32 v{PP+p}, v{d+2*p}, v{d+2*p+1}")
    rdK(1, 2); rdV(0); rdV(8)
    k("s_nop 1")
    mmS(0, 2, 0); mmS(8, 2, 1); mmS(1, 2, 2); rdK(2, 2); rdV(1)
    k("s_nop 7\ns_nop 3")
    merge()
    expcvt(0)
    for p in range(8):
        k(f"v_and_b32 v{PF+p}, v{PP+p}, v{28+p}")
    for p in range(8):
        k(f"v_xor_b32 v{PP+p}, v{PP+p}, v{PF+p}")
    k("s_nop 1")
    pv(0, PF); pv(8, PP)
    cur = 2
    for j in range(1, 8):
        nxt = 0 if cur != 0 else 1
        if j + 1 <= 7:
            mmS(j + 1, 2, nxt)
            rdV(j + 1)
        if j + 2 <= 7: rdK(j + 2, 2)
        ln = skipper(j)
        expcvt(cur)
        k("s_nop 1")
        pv(j, PP)
        k.lab(ln)
        cur = nxt
    stamp(k, 4)
    k(f"""s_nop 7
    s_nop 7
    v_rcp_f32 v{M0}, v{O+12}
    v_add_u32 v18, s27, v4
    v_and_b32 v19, 1, v18
    v_lshrrev_b32 v18, 1, v18
    v_lshlrev_b32 v18, 15, v18
    v_lshlrev_b32 v19, 3, v19
    v_add_u32 v18, v18, v19
    v_add_u32 v18, v18, v7
    s_add_u32 s36, s5, {WS_O}
    s_add_u32 s37, s5, {WS_O + PL}
    s_add_u32 s38, s5, {WS_O + 2*PL}""")
    for x in range(12): k(f"v_mul_f32 v{O+x}, v{O+x}, v{M0}")
    for p in range(6): k(f"v_cvt_pk_bf16_f32 v{PP+p}, v{O+2*p}, v{O+2*p+1}")
    k(f"""buffer_store_dwordx2 v[{PP}:{PP+1}], v18, s[8:11], s36 offen{SC1}
    buffer_store_dwordx2 v[{PP+2}:{PP+3}], v18, s[8:11], s37 offen{SC1}
    v_cmp_gt_u32 vcc, 32, v1
    s_and_saveexec_b64 s[42:43], vcc
    buffer_store_dwordx2 v[{PP+4}:{PP+5}], v18, s[8:11], s38 offen{SC1}
    s_mov_b64 exec, s[42:43]""")
    stamp(k, 7)
    arrive(k, 25, CA)
    stamp(k, 8)
    stamp_flush(k, slot, 3)
    k.tails = getattr(k, "tails", []) + tails
```

```python
from g0 import *
import math
def emit_lng(k, kind, slot=1):
    qkv = kind == 'qkv'
    name = k.newlab(kind)
    RS = 3840 if qkv else 3456
    per = 30 if qkv else 28
    nwg = per * 8
    xoff = WS_XIN if qkv else WS_X1
    soff = WS_SIN if qkv else WS_S1
    outoff = WS_QKV if qkv else WS_H
    csoff = WS_CS if qkv else WS_CS + 8192
    RW = R_WQ if qkv else R_W1
    NST = 10; NS = 4; SLOT = 32768
    end = name + "_end"; fin = name + "_fin"
    k(f"""s_cmp_ge_u32 s2, {nwg}
    s_cbranch_scc1 {end}
    v_and_b32 v1, 63, v0
    s_and_b32 s24, s2, 7
    s_lshr_b32 s25, s2, 3
    s_mov_b32 s28, s3
    s_lshr_b32 s26, s24, 2
    s_mul_i32 s26, s26, {per}
    s_add_u32 s26, s26, s25
    s_and_b32 s24, s24, 3
    s_lshl_b32 s24, s24, 2
    s_and_b32 s25, s26, 3
    s_add_u32 s24, s24, s25
    s_lshr_b32 s25, s26, 2
    s_mul_i32 s26, s24, 344
    s_lshr_b32 s26, s26, 8
    s_add_u32 s27, s26, 1""")
    stamp(k, 0)
    if qkv:
        l = k.newlab("nq")
        k(f"s_cmp_eq_u32 s{SL}, 0\ns_cbranch_scc1 {l}")
        poll(k, 26, 27, CX, 10, name)
        k.lab(l)
    else:
        poll(k, 26, 27, CW, 10, name)
    stamp(k, 1)
    k(f"s_cmp_ge_u32 s28, 4\ns_cbranch_scc0 {name}_cons")
    k(f"""s_sub_u32 s28, s28, 4
    s_lshl_b32 s29, s24, 11
    s_lshl_b32 s30, s28, 16
    s_add_u32 s29, s29, s30
    v_lshlrev_b32 v3, 4, v1
    v_add_u32 v4, s29, v3
    v_add_u32 v6, {PL - 2048}, v4
    v_lshrrev_b32 v8, 4, v1
    v_and_b32 v9, 15, v1
    v_lshlrev_b32 v10, 2, v8
    v_xor_b32 v9, v9, v10""")
    if not qkv:
        k("s_cmp_eq_u32 s25, 13\ns_cselect_b32 s31, 7, 15\nv_and_b32 v9, s31, v9")
    k(f"""s_lshl_b32 s31, s28, 4
    v_add_u32 v8, s31, v8
    s_mov_b32 s32, {RS}
    v_mul_lo_u32 v8, v8, s32
    v_lshlrev_b32 v9, 4, v9
    v_add_u32 v8, v8, v9
    s_lshl_b32 s31, s25, 8
    v_add_u32 v8, s31, v8
    v_add_u32 v9, {4*RS - 1024}, v8
    v_add_u32 v10, {8*RS - 2048}, v8
    v_add_u32 v11, {12*RS - 3072}, v8
    s_lshl_b32 s33, s28, 12
    s_add_u32 s34, s5, {xoff}
    s_mov_b32 s35, 0""")
    def issue(st):
        slot = st % NS
        k(f"s_add_u32 m0, s33, {slot*SLOT}\ns_nop 0")
        for q in range(4):
            k(f"buffer_load_dwordx4 v{4 if q < 2 else 6}, s[8:11], s34 offen offset:{1024*q} lds")
        k(f"s_add_u32 m0, s33, {slot*SLOT + 16384}\ns_add_u32 s34, s34, {8*PL}")
        for q in range(4):
            k(f"buffer_load_dwordx4 v{8+q}, s[{RW}:{RW+3}], s35 offen offset:{1024*q} lds")
        k(f"s_add_u32 s35, s35, {64*RS}")
    for st in range(NS - 1): issue(st)
    for st in range(NST):
        outst = min(NS - 2, NST - 1 - st)
        k(f"s_waitcnt vmcnt({8*outst})\ns_barrier")
        if st + NS - 1 < NST: issue(st + NS - 1)
    k(f"s_branch {fin}")
    k.lab(name + "_cons")
    ACC = 64; FR = 128; CS = 160; B1 = 192; ST = 208
    k(f"""s_and_b32 s29, s28, 1
    s_lshr_b32 s30, s28, 1
    v_lshrrev_b32 v3, 5, v1
    v_and_b32 v4, 31, v1
    s_lshl_b32 s31, s24, 7
    s_lshl_b32 s32, s29, 6
    s_add_u32 s31, s31, s32
    v_add_u32 v5, s31, v4
    v_lshlrev_b32 v6, 3, v5
    v_mul_u32_u24 v7, {5*16384}, v3
    v_add_u32 v6, v6, v7""")
    for pp in range(5):
        k(f"s_add_u32 s33, s5, {soff + pp*16384}")
        for tt in range(2):
            r = ST + 4*pp + 2*tt
            k(f"buffer_load_dwordx2 v[{r}:{r+1}], v6, s[8:11], s33 offen offset:{256*tt}")
    k(f"""s_lshl_b32 s33, s25, 7
    s_lshl_b32 s34, s30, 6
    s_add_u32 s33, s33, s34
    v_lshlrev_b32 v7, 2, v3
    v_add_u32 v7, s33, v7
    v_lshlrev_b32 v8, 2, v7
    v_lshlrev_b32 v9, 1, v7
    s_mov_b32 s34, {csoff}""")
    for ft in range(2):
        for i in range(4):
            r = CS + 16*ft + 4*i
            k(f"buffer_load_dwordx4 v[{r}:{r+3}], v8, s[8:11], s34 offen offset:{(32*ft+8*i)*4}")
    if not qkv:
        for ft in range(2):
            for i in range(4):
                r = B1 + 8*ft + 2*i
                k(f"buffer_load_dwordx2 v[{r}:{r+1}], v9, s[{R_B1}:{R_B1+3}], 0 offen offset:{(32*ft+8*i)*2}")
    k(f"""v_lshlrev_b32 v10, 11, v3
    s_lshl_b32 s34, s29, 6
    v_add_u32 v11, s34, v4
    v_lshlrev_b32 v11, 4, v11
    v_add_u32 v10, v10, v11
    v_lshrrev_b32 v16, 2, v1
    v_and_b32 v16, 3, v16
    v_lshlrev_b32 v17, 3, v3
    v_add_u32 v17, v17, v16
    v_lshlrev_b32 v17, 8, v17
    s_lshl_b32 s34, s30, 3
    v_lshlrev_b32 v18, 2, v16
    v_xor_b32 v18, s34, v18
    v_lshrrev_b32 v19, 4, v1
    v_and_b32 v19, 1, v19
    v_lshlrev_b32 v19, 1, v19
    v_add_u32 v18, v18, v19
    v_lshrrev_b32 v19, 1, v1
    v_and_b32 v19, 1, v19
    v_add_u32 v18, v18, v19
    v_lshlrev_b32 v18, 4, v18
    v_and_b32 v19, 1, v1
    v_lshlrev_b32 v19, 3, v19
    v_add_u32 v18, v18, v19
    v_add_u32 v11, v17, v18
    v_add_u32 v11, 16384, v11
    v_xor_b32 v12, 64, v11
    v_add_u32 v13, 65536, v10
    v_add_u32 v14, 65536, v11
    v_add_u32 v15, 65536, v12""")
    def reads(gi):
        st, ks = divmod(gi, 4); slot = st % NS
        hi = slot >= 2; base = (slot & 1) * SLOT + ks * 4096
        f = FR + 16 * (gi & 1)
        aX = 13 if hi else 10; aW = (14, 15) if hi else (11, 12)
        L = []
        for ft in range(2):
            L.append(f"ds_read_b64_tr_b16 v[{f+4*ft}:{f+4*ft+1}], v{aW[ft]} offset:{base}")
            L.append(f"ds_read_b64_tr_b16 v[{f+4*ft+2}:{f+4*ft+3}], v{aW[ft]} offset:{base+1024}")
        for tt in range(2):
            L.append(f"ds_read_b128 v[{f+8+4*tt}:{f+8+4*tt+3}], v{aX} offset:{base+512*tt}")
        return [L[0], L[1], L[4], L[2], L[3], L[5]]
    k("s_barrier")
    stamp(k, 2)
    for l in reads(0): k(l)
    for gi in range(NST * 4):
        st, ks = divmod(gi, 4)
        f = FR + 16 * (gi & 1)
        k("s_waitcnt lgkmcnt(0)")
        if ks == 3 and st + 1 < NST: k("s_barrier")
        if gi in (3, 19): stamp(k, 3 if gi == 3 else 4)
        R = reads(gi + 1) if gi + 1 < NST * 4 else []
        ri = 0
        for mi, (ft, tt) in enumerate([(0, 0), (0, 1), (1, 0), (1, 1)]):
            a = ACC + 32 * ft + 16 * tt
            c = "0" if gi == 0 else f"v[{a}:{a+15}]"
            k(f"v_mfma_f32_32x32x16_bf16 v[{a}:{a+15}], v[{f+4*ft}:{f+4*ft+3}], v[{f+8+4*tt}:{f+8+4*tt+3}], {c}")
            for _ in range(2):
                if ri < len(R): k(R[ri]); ri += 1
    if not qkv:
        k(f"s_cmp_eq_u32 s25, 13\ns_cselect_b32 s34, s30, 0\ns_cmp_eq_u32 s34, 1\ns_cbranch_scc1 {fin}")
    stamp(k, 5)
    k("s_waitcnt vmcnt(0)")
    stamp(k, 6)
    for pp in range(1, 5):
        k(f"v_pk_add_f32 v[{ST}:{ST+1}], v[{ST}:{ST+1}], v[{ST+4*pp}:{ST+4*pp+1}]\nv_pk_add_f32 v[{ST+2}:{ST+3}], v[{ST+2}:{ST+3}], v[{ST+4*pp+2}:{ST+4*pp+3}]")
    for j in range(4): swap_add(k, ST + j, 20)
    sc = 20 ** -0.5 * math.log2(math.e)
    if qkv:
        k(f"s_cmp_lt_u32 s25, 5\ns_cselect_b32 s34, {f2h(sc)}, 1.0")
    k(f"s_mov_b32 s35, {f2h(1/640)}\ns_mov_b32 s36, {f2h(1e-5)}")
    for tt in range(2):
        m = 22 + 4*tt; r = 24 + 4*tt
        k(f"""v_mul_f32 v{m}, s35, v{ST+2*tt}
        v_mul_f32 v20, s35, v{ST+2*tt+1}
        v_fma_f32 v20, -v{m}, v{m}, v20
        v_add_f32 v20, s36, v20
        v_rsq_f32 v{r}, v20
        s_nop 0""")
        if qkv: k(f"v_mul_f32 v{r}, s34, v{r}")
    if not qkv:
        for ft in range(2):
            for i in range(4):
                r = B1 + 8*ft + 2*i; d = 224 + 16*ft + 4*i
                k(f"v_lshlrev_b32 v{d}, 16, v{r}\nv_and_b32 v{d+1}, 0xffff0000, v{r}\nv_lshlrev_b32 v{d+2}, 16, v{r+1}\nv_and_b32 v{d+3}, 0xffff0000, v{r+1}")
    k(f"""v_lshlrev_b32 v30, 15, v3
    v_lshlrev_b32 v31, 4, v5
    v_add_u32 v30, v30, v31
    s_lshr_b32 s37, s33, 3
    s_lshl_b32 s37, s37, 15
    s_add_u32 s37, s37, s5
    s_add_u32 s37, s37, {outoff}""")
    T = 32
    n = 0
    for ft in range(2):
        for i2 in range(2):
            for tt in range(2):
                a = ACC + 32*ft + 16*tt + 8*i2; cs = CS + 16*ft + 8*i2; m = 22 + 4*tt; r = 24 + 4*tt
                t = T + 4 * (n % 4); n += 1
                for p in range(4):
                    x = a + 2*p
                    k(f"v_pk_fma_f32 v[{x}:{x+1}], v[{m}:{m+1}], v[{cs+2*p}:{cs+2*p+1}], v[{x}:{x+1}] op_sel_hi:[0,1,1] neg_lo:[1,0,0] neg_hi:[1,0,0]")
                for p in range(4):
                    x = a + 2*p
                    if qkv:
                        k(f"v_pk_mul_f32 v[{x}:{x+1}], v[{r}:{r+1}], v[{x}:{x+1}] op_sel_hi:[0,1]")
                    else:
                        b = 224 + 16*ft + 8*i2 + 2*p
                        k(f"v_pk_fma_f32 v[{x}:{x+1}], v[{r}:{r+1}], v[{x}:{x+1}], v[{b}:{b+1}] op_sel_hi:[0,1,1]")
                if not qkv:
                    for p in range(8): k(f"v_max_f32 v{a+p}, 0, v{a+p}")
                    for p in range(4):
                        x = a + 2*p
                        k(f"v_pk_mul_f32 v[{x}:{x+1}], v[{x}:{x+1}], v[{x}:{x+1}]")
                for p in range(4):
                    k(f"v_cvt_pk_bf16_f32 v{t+p}, v{a+2*p}, v{a+2*p+1}")
                k(f"s_nop 1\nv_permlane32_swap_b32 v{t}, v{t+2}\nv_permlane32_swap_b32 v{t+1}, v{t+3}")
                k(f"s_nop 0\nbuffer_store_dwordx4 v[{t}:{t+3}], v30, s[8:11], s37 offen offset:{512*tt}{SC1}")
            k(f"s_add_u32 s37, s37, {2*PL}")
    stamp(k, 7)
    k.lab(fin)
    arrive(k, 24, CQ if qkv else CH)
    stamp(k, 8)
    stamp_flush(k, slot, 3)
    k.lab(end)

import struct
def f2h(x):
    return "0x%08x" % struct.unpack("<I", struct.pack("<f", x))[0]
```

```python
from g0 import *
def gen_prep():
    k = Kern("prep", 256, 8192, vgpr=128)
    k("s_cmp_ge_u32 s2, 256\ns_cbranch_scc1 prep_end")
    k.srd(8, 80, WS_SIZE); k.srd(12, 0, 2048*1280); k.srd(16, 8, 640*3840); k.srd(20, 32, 640*3456)
    k.srd(24, 16, 640*1280); k.srd(28, 48, 1728*1280)
    k("v_and_b32 v1, 63, v0\nv_lshrrev_b32 v2, 6, v0")
    k.srd_fin()
    k("s_cmp_ge_u32 s2, 185\ns_cbranch_scc1 prep_pf")
    k("s_cmp_ge_u32 s2, 57\ns_cbranch_scc1 prep_x")
    k("""s_cmp_ge_u32 s2, 30
    s_cbranch_scc1 prep_cs1
    s_mov_b32 s32, 3840
    s_lshl_b32 s33, s2, 7
    s_lshl_b32 s34, s2, 8
    s_add_u32 s34, s34, %d
    s_branch prep_cs2""" % WS_CS)
    k.lab("prep_cs1")
    k("""s_mov_b32 s16, s20
    s_mov_b32 s17, s21
    s_mov_b32 s18, s22
    s_mov_b32 s32, 3456
    s_sub_u32 s35, s2, 30
    s_lshl_b32 s33, s35, 7
    s_lshl_b32 s34, s35, 8
    s_add_u32 s34, s34, %d""" % (WS_CS + 8192))
    k.lab("prep_cs2")
    k("""v_lshrrev_b32 v3, 3, v0
    v_and_b32 v4, 7, v0
    v_mul_lo_u32 v3, v3, s32
    v_lshlrev_b32 v4, 4, v4
    v_add_u32 v3, v3, v4
    v_add_u32 v3, s33, v3
    s_lshl_b32 s36, s32, 6
    s_mov_b32 s37, 0""")
    for i in range(10):
        k(f"buffer_load_dwordx4 v[{16+4*i}:{19+4*i}], v3, s[16:19], s37 offen\ns_add_u32 s37, s37, s36")
    for j in range(8): k(f"v_mov_b32 v{64+j}, 0")
    for i in range(10):
        k(f"s_waitcnt vmcnt({9-i})")
        for d in range(4):
            r = 16 + 4*i + d
            k(f"v_lshlrev_b32 v4, 16, v{r}\nv_and_b32 v5, 0xffff0000, v{r}\nv_add_f32 v{64+2*d}, v{64+2*d}, v4\nv_add_f32 v{65+2*d}, v{65+2*d}, v5")
    k("v_xor_b32 v6, 8, v1\nv_lshlrev_b32 v6, 2, v6\nv_xor_b32 v7, 16, v1\nv_lshlrev_b32 v7, 2, v7\nv_xor_b32 v8, 32, v1\nv_lshlrev_b32 v8, 2, v8")
    for a in (6, 7, 8):
        for j in range(8): k(f"ds_bpermute_b32 v{72+j}, v{a}, v{64+j}")
        k("s_waitcnt lgkmcnt(0)")
        for j in range(8): k(f"v_add_f32 v{64+j}, v{64+j}, v{72+j}")
    k("""v_lshlrev_b32 v9, 8, v2
    v_lshlrev_b32 v10, 5, v1
    v_add_u32 v9, v9, v10
    v_cmp_gt_u32 vcc, 8, v1
    s_and_saveexec_b64 s[40:41], vcc
    ds_write_b128 v9, v[64:67]
    ds_write_b128 v9, v[68:71] offset:16
    s_mov_b64 exec, s[40:41]
    s_waitcnt lgkmcnt(0)
    s_barrier
    v_cmp_gt_u32 vcc, 64, v0
    s_and_saveexec_b64 s[40:41], vcc
    s_cbranch_execz prep_end
    v_lshlrev_b32 v9, 2, v0""")
    for w in range(8): k(f"ds_read_b32 v{16+w}, v9 offset:{256*w}")
    k("s_waitcnt lgkmcnt(0)")
    for w in range(1, 8): k(f"v_add_f32 v16, v16, v{16+w}")
    k(f"buffer_store_dword v16, v9, s[8:11], s34 offen{SC1}\ns_endpgm")
    k.lab("prep_x")
    k("""s_sub_u32 s32, s2, 57
    s_lshl_b32 s32, s32, 4
    v_and_b32 v3, 7, v1
    v_and_b32 v4, 1, v2
    v_lshlrev_b32 v4, 3, v4
    v_add_u32 v3, v3, v4
    v_add_u32 v4, s32, v3
    v_lshrrev_b32 v5, 3, v1
    v_lshrrev_b32 v6, 1, v2
    v_lshlrev_b32 v6, 3, v6
    v_add_u32 v5, v5, v6
    s_mov_b32 s33, 1280
    v_mul_lo_u32 v7, v4, s33
    v_lshlrev_b32 v8, 4, v5
    v_add_u32 v7, v7, v8
    v_lshlrev_b32 v8, 15, v5
    v_lshlrev_b32 v9, 4, v4
    v_add_u32 v8, v8, v9
    v_mov_b32 v24, 0
    v_mov_b32 v25, 0
    v_mov_b32 v26, 0
    v_mov_b32 v27, 0
    v_cmp_gt_u32 vcc, 16, v5
    buffer_load_dwordx4 v[16:19], v7, s[12:15], 0 offen
    buffer_load_dwordx4 v[20:23], v7, s[12:15], 0 offen offset:512
    s_and_saveexec_b64 s[40:41], vcc
    s_cbranch_execz prep_x1
    buffer_load_dwordx4 v[24:27], v7, s[12:15], 0 offen offset:1024""")
    k.lab("prep_x1")
    k(f"""s_mov_b64 exec, s[40:41]
    s_mov_b32 s34, {WS_X0}
    s_mov_b32 s35, {WS_X0 + 32*PL}
    s_mov_b32 s36, {WS_X0 + 64*PL}
    v_mov_b32 v30, 0
    v_mov_b32 v31, 0
    s_waitcnt vmcnt(0)
    buffer_store_dwordx4 v[16:19], v8, s[8:11], s34 offen{SC1}
    buffer_store_dwordx4 v[20:23], v8, s[8:11], s35 offen{SC1}
    s_and_saveexec_b64 s[40:41], vcc
    s_cbranch_execz prep_x2
    buffer_store_dwordx4 v[24:27], v8, s[8:11], s36 offen{SC1}""")
    k.lab("prep_x2")
    k("s_mov_b64 exec, s[40:41]")
    for r in range(16, 28):
        k(f"v_lshlrev_b32 v4, 16, v{r}\nv_and_b32 v6, 0xffff0000, v{r}\nv_add_f32 v30, v30, v4\nv_fma_f32 v31, v4, v4, v31\nv_add_f32 v30, v30, v6\nv_fma_f32 v31, v6, v6, v31")
    k("v_xor_b32 v10, 8, v1\nv_lshlrev_b32 v10, 2, v10\nv_xor_b32 v11, 16, v1\nv_lshlrev_b32 v11, 2, v11\nv_xor_b32 v12, 32, v1\nv_lshlrev_b32 v12, 2, v12")
    for a in (10, 11, 12):
        k(f"ds_bpermute_b32 v32, v{a}, v30\nds_bpermute_b32 v33, v{a}, v31\ns_waitcnt lgkmcnt(0)\nv_add_f32 v30, v30, v32\nv_add_f32 v31, v31, v33")
    k("""v_lshrrev_b32 v6, 1, v2
    v_lshlrev_b32 v6, 7, v6
    v_lshlrev_b32 v9, 3, v3
    v_add_u32 v6, v6, v9
    v_cmp_gt_u32 vcc, 8, v1
    s_and_saveexec_b64 s[40:41], vcc
    ds_write_b64 v6, v[30:31]
    s_mov_b64 exec, s[40:41]
    s_waitcnt lgkmcnt(0)
    s_barrier
    v_cmp_gt_u32 vcc, 160, v0
    s_and_saveexec_b64 s[40:41], vcc
    s_cbranch_execz prep_end
    v_and_b32 v3, 15, v0
    v_lshrrev_b32 v4, 4, v0
    v_lshlrev_b32 v9, 3, v3
    ds_read_b64 v[16:17], v9
    ds_read_b64 v[18:19], v9 offset:128
    ds_read_b64 v[20:21], v9 offset:256
    ds_read_b64 v[22:23], v9 offset:384
    s_waitcnt lgkmcnt(0)
    v_add_f32 v16, v16, v18
    v_add_f32 v17, v17, v19
    v_add_f32 v20, v20, v22
    v_add_f32 v21, v21, v23
    v_add_f32 v16, v16, v20
    v_add_f32 v17, v17, v21
    v_cmp_eq_u32 vcc, 0, v4
    s_nop 1
    v_cndmask_b32 v16, 0, v16, vcc
    v_cndmask_b32 v17, 0, v17, vcc
    v_lshlrev_b32 v4, 14, v4
    v_add_u32 v3, s32, v3
    v_lshlrev_b32 v3, 3, v3
    v_add_u32 v3, v3, v4""")
    k(f"s_mov_b32 s34, {WS_S0}\nbuffer_store_dwordx2 v[16:17], v3, s[8:11], s34 offen{SC1}\ns_endpgm")
    k.lab("prep_pf")
    k(f"""s_cmp_eq_u32 s2, 185
    s_cbranch_scc0 prep_pf2
    v_lshlrev_b32 v3, 7, v0
    v_mov_b32 v4, 0
    s_mov_b32 s33, {WS_CNT}
    s_mov_b32 s34, {WS_CNT + LSTR}
    s_mov_b32 s35, {WS_CNT + 2*LSTR}
    v_cmp_gt_u32 vcc, 128, v0
    s_and_saveexec_b64 s[40:41], vcc
    s_cbranch_execz prep_pf1
    buffer_store_dword v4, v3, s[8:11], s33 offen sc1
    buffer_store_dword v4, v3, s[8:11], s34 offen sc1
    buffer_store_dword v4, v3, s[8:11], s35 offen sc1""")
    k.lab("prep_pf1")
    k("s_mov_b64 exec, s[40:41]")
    k.lab("prep_pf2")
    k("""s_sub_u32 s32, s2, 185
    s_lshl_b32 s32, s32, 13
    v_lshlrev_b32 v3, 4, v0
    v_add_u32 v3, s32, v3
    s_mov_b32 s33, 0""")
    k("v_mov_b32 v4, v3")
    for i in range(2):
        k(f"buffer_load_dwordx4 v[{16+4*i}:{19+4*i}], v4, s[24:27], 0 offen\nv_add_u32 v4, 581632, v4")
    for i in range(4):
        k(f"buffer_load_dwordx4 v[{32+4*i}:{35+4*i}], v3, s[28:31], 0 offen\nv_add_u32 v3, 581632, v3")
    k("s_waitcnt vmcnt(0)")
    k.lab("prep_end")
    k("s_endpgm")
    return k
```

```python
from g0 import *
def emit_rg(k, kind, slot=2):
    wo = kind == 'wo'
    name = k.newlab(kind)
    NST = 10 if wo else 27
    NS = 6; SLOT = 20480; RS = 1280
    xoff = WS_O if wo else WS_H
    resoff = WS_XIN if wo else WS_X1
    outoff = WS_X1 if wo else WS_XIN + LSTR
    soff = WS_S1 if wo else WS_SIN + LSTR
    RW = R_WO if wo else R_W2
    end = name + "_end"; fin = name + "_fin"
    k(f"""s_and_b32 s24, s2, 7
    s_lshr_b32 s25, s2, 3
    s_cmp_ge_u32 s25, 28
    s_cbranch_scc1 {end}
    v_and_b32 v1, 63, v0
    s_mov_b32 s28, s3
    s_mul_i32 s26, s24, 28
    s_add_u32 s26, s26, s25
    s_cmp_ge_u32 s26, 220
    s_cbranch_scc1 {end}
    s_mul_i32 s24, s26, 6554
    s_lshr_b32 s24, s24, 16
    s_mul_i32 s25, s24, 10
    s_sub_u32 s25, s26, s25
    s_mul_i32 s26, s24, 3
    s_add_u32 s27, s26, 2
    s_lshr_b32 s26, s26, 2
    s_lshr_b32 s27, s27, 2
    s_min_u32 s27, s27, 15""")
    stamp(k, 0)
    poll(k, 26, 27, CA if wo else CH, 16 if wo else 14, name)
    stamp(k, 1)
    k(f"s_cmp_ge_u32 s28, 4\ns_cbranch_scc0 {name}_cons")
    k(f"""s_sub_u32 s28, s28, 4
    s_mul_i32 s29, s28, 192
    s_mul_i32 s30, s24, 96
    s_mov_b32 s31, 683
    s_mov_b32 s32, 96
    s_cmp_eq_u32 s24, 21
    s_cselect_b32 s38, 31, 127""")
    for q in range(3):
        k(f"""v_add_u32 v3, s29, v1
        v_add_u32 v3, {64*q}, v3
        v_mul_lo_u32 v4, v3, s31
        v_lshrrev_b32 v4, 16, v4
        v_mul_lo_u32 v5, v4, s32
        v_sub_u32 v5, v3, v5
        v_and_b32 v5, s38, v5
        v_add_u32 v5, s30, v5
        v_lshlrev_b32 v5, 4, v5
        v_lshlrev_b32 v4, 15, v4
        v_add_u32 v5, v5, v4
        v_subrev_u32 v{8+q}, {1024*q}, v5""")
    k(f"""v_lshrrev_b32 v3, 3, v1
    s_lshl_b32 s31, s28, 4
    v_add_u32 v3, s31, v3
    s_mov_b32 s32, {RS}
    v_mul_lo_u32 v3, v3, s32
    v_and_b32 v4, 7, v1
    v_lshrrev_b32 v5, 4, v1
    v_and_b32 v5, 1, v5
    v_lshlrev_b32 v5, 2, v5
    v_xor_b32 v4, v4, v5
    v_lshlrev_b32 v4, 4, v4
    v_add_u32 v3, v3, v4
    s_lshl_b32 s31, s25, 7
    v_add_u32 v11, s31, v3
    v_add_u32 v12, {8*RS - 1024}, v11
    s_mul_i32 s33, s28, 3072
    s_lshl_b32 s36, s28, 11
    s_add_u32 s36, s36, 12288
    s_add_u32 s34, s5, {xoff}
    s_mov_b32 s35, 0""")
    def issue(st):
        sl = st % NS
        k(f"s_add_u32 m0, s33, {sl*SLOT}\ns_nop 0")
        for q in range(3):
            k(f"buffer_load_dwordx4 v{8+q}, s[8:11], s34 offen offset:{1024*q} lds")
        k(f"s_add_u32 m0, s36, {sl*SLOT}\ns_add_u32 s34, s34, {8*PL}")
        for q in range(2):
            k(f"buffer_load_dwordx4 v{11+q}, s[{RW}:{RW+3}], s35 offen offset:{1024*q} lds")
        k(f"s_add_u32 s35, s35, {64*RS}")
    for st in range(NS - 1): issue(st)
    for st in range(NST):
        outst = min(NS - 2, NST - 1 - st)
        k(f"s_waitcnt vmcnt({5*outst})\ns_barrier")
        if st + NS - 1 < NST: issue(st + NS - 1)
    k(f"s_branch {fin}")
    k.lab(name + "_cons")
    lc = name + "_c3"
    k(f"s_cmp_eq_u32 s28, 3\ns_cbranch_scc0 {lc}")
    for st in range(NST): k("s_barrier")
    k(f"s_branch {fin}")
    k.lab(lc)
    ACC = 128; FR = 64; RES = 16; B2 = 112
    k(f"""v_lshrrev_b32 v3, 5, v1
    v_and_b32 v4, 31, v1
    s_mul_i32 s31, s24, 96
    s_lshl_b32 s32, s28, 5
    s_add_u32 s31, s31, s32
    v_add_u32 v5, s31, v4
    v_lshlrev_b32 v6, 4, v5
    v_lshlrev_b32 v7, 3, v3
    v_add_u32 v6, v6, v7
    s_lshl_b32 s33, s25, 18
    s_add_u32 s33, s33, s5
    s_add_u32 s33, s33, {resoff}""")
    lr = name + "_nr"
    k(f"s_cmp_ge_u32 s31, 2048\ns_cselect_b32 s37, 1, 0\ns_cbranch_scc1 {lr}")
    for ft in range(2):
        for i in range(4):
            r = RES + 8*ft + 2*i
            k(f"buffer_load_dwordx2 v[{r}:{r+1}], v6, s[8:11], s33 offen\ns_add_u32 s33, s33, {PL}")
    if not wo:
        k(f"v_lshlrev_b32 v7, 3, v3\ns_lshl_b32 s34, s25, 7\nv_add_u32 v7, s34, v7")
        for ft in range(2):
            for i in range(4):
                r = B2 + 8*ft + 2*i
                k(f"buffer_load_dwordx2 v[{r}:{r+1}], v7, s[{R_B2}:{R_B2+3}], 0 offen offset:{(32*ft+8*i)*2}")
    k.lab(lr)
    k(f"""v_mul_u32_u24 v8, 1536, v3
    s_lshl_b32 s34, s28, 5
    v_add_u32 v9, s34, v4
    v_lshlrev_b32 v9, 4, v9
    v_add_u32 v8, v8, v9
    v_lshrrev_b32 v14, 2, v1
    v_and_b32 v14, 3, v14
    v_lshlrev_b32 v15, 3, v3
    v_add_u32 v15, v15, v14
    v_lshlrev_b32 v15, 7, v15
    v_lshrrev_b32 v14, 1, v14
    v_lshlrev_b32 v14, 2, v14
    v_lshrrev_b32 v9, 4, v1
    v_and_b32 v9, 1, v9
    v_lshlrev_b32 v9, 1, v9
    v_add_u32 v14, v14, v9
    v_lshrrev_b32 v9, 1, v1
    v_and_b32 v9, 1, v9
    v_add_u32 v14, v14, v9
    v_lshlrev_b32 v14, 4, v14
    v_and_b32 v9, 1, v1
    v_lshlrev_b32 v9, 3, v9
    v_add_u32 v14, v14, v9
    v_add_u32 v9, v15, v14
    v_add_u32 v9, 12288, v9
    v_xor_b32 v10, 64, v9
    v_add_u32 v11, {3*SLOT}, v8
    v_add_u32 v12, {3*SLOT}, v9
    v_add_u32 v13, {3*SLOT}, v10""")
    def reads(gi):
        st, hf = divmod(gi, 2); sl = st % NS
        hi = sl >= 3; base = (sl % 3) * SLOT
        f = FR + 24 * (gi & 1)
        aX = 11 if hi else 8; aW = (12, 13) if hi else (9, 10)
        L = []
        for kk in range(2):
            ks = 2*hf + kk; ff = f + 12*kk
            L.append(f"ds_read_b64_tr_b16 v[{ff}:{ff+1}], v{aW[0]} offset:{base+ks*2048}")
            L.append(f"ds_read_b64_tr_b16 v[{ff+2}:{ff+3}], v{aW[0]} offset:{base+ks*2048+512}")
            L.append(f"ds_read_b128 v[{ff+8}:{ff+11}], v{aX} offset:{base+ks*3072}")
            L.append(f"ds_read_b64_tr_b16 v[{ff+4}:{ff+5}], v{aW[1]} offset:{base+ks*2048}")
            L.append(f"ds_read_b64_tr_b16 v[{ff+6}:{ff+7}], v{aW[1]} offset:{base+ks*2048+512}")
        return L
    k("s_barrier")
    stamp(k, 2)
    for l in reads(0): k(l)
    for gi in range(NST * 2):
        st, hf = divmod(gi, 2)
        f = FR + 24 * (gi & 1)
        k("s_waitcnt lgkmcnt(0)")
        if hf == 1 and st + 1 < NST: k("s_barrier")
        R = reads(gi + 1) if gi + 1 < NST * 2 else []
        ri = 0
        for mi, (kk, ft) in enumerate([(0, 0), (0, 1), (1, 0), (1, 1)]):
            a = ACC + 16 * ft; ff = f + 12*kk
            c = "0" if (gi == 0 and kk == 0) else f"v[{a}:{a+15}]"
            k(f"v_mfma_f32_32x32x16_bf16 v[{a}:{a+15}], v[{ff+4*ft}:{ff+4*ft+3}], v[{ff+8}:{ff+11}], {c}")
            for _ in range(3):
                if ri < len(R): k(R[ri]); ri += 1
    stamp(k, 5)
    k(f"s_cmp_eq_u32 s37, 1\ns_cbranch_scc1 {fin}")
    k("s_waitcnt vmcnt(0)\ns_nop 7\ns_nop 3")
    stamp(k, 6)
    T = 64
    for ft in range(2):
        for i in range(4):
            r = RES + 8*ft + 2*i; a = ACC + 16*ft + 4*i; t = T + 4*(i & 1)
            k(f"""v_lshlrev_b32 v{t}, 16, v{r}
            v_and_b32 v{t+1}, 0xffff0000, v{r}
            v_lshlrev_b32 v{t+2}, 16, v{r+1}
            v_and_b32 v{t+3}, 0xffff0000, v{r+1}
            v_pk_add_f32 v[{a}:{a+1}], v[{a}:{a+1}], v[{t}:{t+1}]
            v_pk_add_f32 v[{a+2}:{a+3}], v[{a+2}:{a+3}], v[{t+2}:{t+3}]""")
            if not wo:
                b = B2 + 8*ft + 2*i; t = T + 8 + 4*(i & 1)
                k(f"""v_lshlrev_b32 v{t}, 16, v{b}
                v_and_b32 v{t+1}, 0xffff0000, v{b}
                v_lshlrev_b32 v{t+2}, 16, v{b+1}
                v_and_b32 v{t+3}, 0xffff0000, v{b+1}
                v_pk_add_f32 v[{a}:{a+1}], v[{a}:{a+1}], v[{t}:{t+1}]
                v_pk_add_f32 v[{a+2}:{a+3}], v[{a+2}:{a+3}], v[{t+2}:{t+3}]""")
    cv = []
    n = 0
    for ft in range(2):
        for i2 in range(2):
            a = ACC + 16*ft + 8*i2; t = T + 16 + 4*n; n += 1
            for p in range(4):
                k(f"v_cvt_pk_bf16_f32 v{t+p}, v{a+2*p}, v{a+2*p+1}")
            k(f"s_nop 1\nv_permlane32_swap_b32 v{t}, v{t+2}\nv_permlane32_swap_b32 v{t+1}, v{t+3}")
            cv.append((ft, i2, t))
    if not wo:
        lf = name + "_nf"
        k(f"""s_cmp_eq_u32 s5, 0
        s_cbranch_scc1 {lf}
        s_mov_b32 s34, 1280
        v_mul_lo_u32 v14, v5, s34
        v_lshlrev_b32 v15, 4, v3
        v_add_u32 v14, v14, v15
        s_lshl_b32 s34, s25, 7""")
        for ft, i2, t in cv:
            k(f"buffer_store_dwordx4 v[{t}:{t+3}], v14, s[{R_OUT}:{R_OUT+3}], s34 offen offset:{(32*ft+16*i2)*2}")
        k("s_endpgm")
        k.lab(lf)
    k(f"""v_lshlrev_b32 v14, 15, v3
    v_lshlrev_b32 v15, 4, v5
    v_add_u32 v14, v14, v15
    s_lshl_b32 s34, s25, 18
    s_add_u32 s34, s34, s5
    s_add_u32 s34, s34, {outoff}""")
    for ft, i2, t in cv:
        k(f"buffer_store_dwordx4 v[{t}:{t+3}], v14, s[8:11], s34 offen{SC1}\ns_add_u32 s34, s34, {2*PL}")
    k(f"v_pk_add_f32 v[100:101], v[{ACC}:{ACC+1}], v[{ACC+2}:{ACC+3}]\nv_pk_mul_f32 v[102:103], v[{ACC}:{ACC+1}], v[{ACC}:{ACC+1}]\nv_pk_fma_f32 v[102:103], v[{ACC+2}:{ACC+3}], v[{ACC+2}:{ACC+3}], v[102:103]")
    for p in range(2, 16):
        x = ACC + 2*p
        k(f"v_pk_add_f32 v[100:101], v[100:101], v[{x}:{x+1}]\nv_pk_fma_f32 v[102:103], v[{x}:{x+1}], v[{x}:{x+1}], v[102:103]")
    k("v_add_f32 v100, v100, v101\nv_add_f32 v101, v102, v103")
    swap_add(k, 100, 104); swap_add(k, 101, 104)
    k(f"""v_lshlrev_b32 v15, 3, v4
    s_lshl_b32 s35, s31, 3
    s_lshl_b32 s36, s25, 14
    s_add_u32 s35, s35, s36
    s_add_u32 s35, s35, s5
    s_add_u32 s35, s35, {soff}
    v_cmp_gt_u32 vcc, 32, v1
    s_and_saveexec_b64 s[40:41], vcc
    buffer_store_dwordx2 v[100:101], v15, s[8:11], s35 offen{SC1}
    s_mov_b64 exec, s[40:41]""")
    stamp(k, 7)
    k.lab(fin)
    if not wo:
        le = name + "_le"
        k(f"s_cmp_eq_u32 s5, 0\ns_cbranch_scc1 {le}\ns_endpgm")
        k.lab(le)
    arrive(k, 24, CW if wo else CX, nextlayer=not wo)
    stamp(k, 8)
    stamp_flush(k, slot, 3)
    k.lab(end)
```

```python
import sys
sys.path.insert(0, "exp")
from g0 import *
import g0, g_prep, g_lng, g_rg, g_att
def gen_main():
    k = Kern("main", 256, 131072, vgpr=256, sgpr=102)
    k("s_cmp_ge_u32 s2, 256\ns_cbranch_scc1 main_end")
    k.srd(R_WS, 80, WS_SIZE); k.srd(R_WQ, 8, 640*3840); k.srd(R_WO, 16, 640*1280); k.srd(R_W1, 32, 640*3456)
    k.srd(R_W2, 48, 1728*1280); k.srd(R_B1, 40, 3456); k.srd(R_B2, 56, 1280); k.srd(R_OUT, 64, 2048*1280)
    k("v_lshrrev_b32 v2, 6, v0\ns_nop 1\nv_readfirstlane_b32 s3, v2\ns_mov_b32 s5, 0")
    k.srd_fin()
    k.lab("main_loop")
    g_lng.emit_lng(k, "qkv", 1)
    g_att.emit_att(k, 2)
    g_rg.emit_rg(k, "wo", 3)
    g_lng.emit_lng(k, "w1", 4)
    g_rg.emit_rg(k, "w2", 5)
    k(f"s_cmp_eq_u32 s5, 0\ns_cbranch_scc0 main_end\ns_mov_b32 s5, {LSTR}\ns_branch main_loop")
    k.lab("main_end")
    k("s_endpgm")
    for ls, ln in k.tails:
        k.lab(ls)
        k(f"s_nop 7\ns_nop 7\ns_branch {ln}")
    return k
def build(path):
    emit_file(path, [g_prep.gen_prep(), gen_main()], ["prep", "main"])
if __name__ == "__main__":
    g0.PROF = len(sys.argv) > 2 and sys.argv[2] == "prof"
    build(sys.argv[1] if len(sys.argv) > 1 else "k.s")
```

```python
KN = "interleave_layers__sliding_block__dense_activation_squared_relu__prompt"
PL = 32768
LSTR = 0x1800000
WS_QKV = 0x0; WS_O = 0x780000; WS_H = 0xA00000; WS_X1 = 0x10C0000; WS_XIN = 0x1340000
WS_S1 = 0x15C0000; WS_SIN = 0x15E8000
WS_CS = 0x1700000
WS_CNT = 0x1710000
CQ = 0; CA = 16; CW = 32; CH = 64; CX = 96
WS_X0 = WS_XIN; WS_S0 = WS_SIN
WS_SIZE = 0x6000000
SC1 = " sc1"

class Kern:
    def __init__(s, name, grid, lds, vgpr=256, sgpr=100):
        s.name = name; s.grid = grid; s.lds = lds; s.vgpr = vgpr; s.sgpr = sgpr
        s.L = []; s.n = 0
    def __call__(s, txt):
        for ln in txt.strip("\n").split("\n"):
            s.L.append("  " + ln.strip())
    def lab(s, l): s.L.append(l + ":")
    def newlab(s, p="L"):
        s.n += 1; return f"{s.name}_{p}{s.n}"
    def text(s):
        n = s.name + "_kernel"
        return f".globl {n}\n.p2align 8\n.type {n},@function\n{n}:\n" + "\n".join(s.L) + "\n"
    def desc(s):
        n = s.name + "_kernel"
        return f""".p2align 6
.amdhsa_kernel {n}
  .amdhsa_next_free_vgpr {s.vgpr}
  .amdhsa_next_free_sgpr {s.sgpr}
  .amdhsa_accum_offset {((s.vgpr + 3) // 4) * 4}
  .amdhsa_group_segment_fixed_size 0
  .amdhsa_kernarg_size 88
  .amdhsa_user_sgpr_count 2
  .amdhsa_user_sgpr_kernarg_segment_ptr 1
  .amdhsa_system_sgpr_workgroup_id_x 1
.end_amdhsa_kernel
"""
    def srd(s, d, argoff, size):
        s(f"s_load_dwordx2 s[{d}:{d+1}], s[0:1], {argoff}")
        s._srds = getattr(s, "_srds", []) + [(d, size)]
    def srd_fin(s):
        s("s_waitcnt lgkmcnt(0)")
        for d, size in s._srds:
            s(f"s_mov_b32 s{d+2}, {size}\ns_mov_b32 s{d+3}, 0x20000")
        s._srds = []

def emit_file(path, kerns, order):
    hdr = "; generated by exp/gen.py (hand-written generator)\n"
    byname = {k.name: k for k in kerns}
    for nm in order:
        k = byname[nm]
        hdr += f"; @launch kernel={k.name}_kernel grid=({k.grid},1,1) block=(512,1,1) lds={k.lds}\n"
    s = hdr + '.amdgcn_target "amdgcn-amd-amdhsa--gfx950"\n.text\n'
    for k in kerns: s += k.text()
    s += '.section .rodata,"a"\n'
    for k in kerns: s += k.desc()
    open(path, "w").write(s)

def swap_add(k, a, t):
    k(f"v_mov_b32 v{t}, v{a}\ns_nop 1\nv_permlane32_swap_b32 v{a}, v{t}\ns_nop 1\nv_add_f32 v{a}, v{a}, v{t}")

PROF = False
WS_PROF = 0x5000000
def stampc(k, idx, sreg=100):
    import g0
    if not g0.PROF: return
    k(f"s_memtime s[{sreg}:{sreg+1}]\ns_waitcnt lgkmcnt(0)\nv_writelane_b32 v59, s{sreg}, {idx}")
def stamp(k, idx, sreg=100):
    import g0
    if not g0.PROF: return
    k(f"s_memrealtime s[{sreg}:{sreg+1}]\ns_waitcnt lgkmcnt(0)\nv_writelane_b32 v59, s{sreg}, {idx}")
def stamp_flush(k, slot, wave_sreg, wavesel=0):
    import g0
    if not g0.PROF: return
    l = k.newlab("pf")
    k(f"""s_cmp_eq_u32 s{wave_sreg}, {wavesel}
    s_cbranch_scc0 {l}
    v_and_b32 v58, 63, v0
    v_lshlrev_b32 v58, 2, v58
    s_lshl_b32 s100, s2, 8
    s_add_u32 s100, s100, {WS_PROF + slot*65536}
    s_cmp_eq_u32 s5, 0
    s_cselect_b32 s101, 0, {5*65536}
    s_add_u32 s100, s100, s101
    v_cmp_gt_u32 vcc, 16, v0
    s_and_saveexec_b64 s[44:45], vcc
    buffer_store_dword v59, v58, s[8:11], s100 offen
    s_mov_b64 exec, s[44:45]
    s_nop 4
    v_mov_b32 v59, 0""")
    k.lab(l)

def PROFON():
    import g0
    return g0.PROF

SID = 2; SWAVE = 3; SL = 5
R_WS = 8; R_WQ = 12; R_WO = 16; R_W1 = 20; R_W2 = 84; R_B1 = 88; R_B2 = 92; R_OUT = 96; R_DBG = 80; R_X = 48; SAX = 6
import os
CSTR = int(os.environ.get('CSTR', 128))
NPOLL = int(os.environ.get('NPOLL', 1))
REP = int(os.environ.get('REP', 8))
SLP = int(os.environ.get('SLP', 2))
def poll(k, first, last, cbase, expect, tag):
    import g0
    lw = k.newlab("pw"); lp = k.newlab("pl")
    NP = g0.NPOLL
    k(f"""s_cmp_eq_u32 s{SWAVE}, 0
    s_cbranch_scc0 {lw}
    v_and_b32 v60, 63, v0
    v_add_u32 v60, s{first}, v60
    v_min_u32 v60, s{last}, v60
    v_mul_u32_u24 v60, {g0.CSTR}, v60
    s_add_u32 s46, s{SL}, {WS_CNT + cbase*g0.CSTR}
    s_mov_b32 s47, 0""")
    if g0.REP > 1: k(f"s_and_b32 s45, s2, {g0.REP-1}\ns_lshl_b32 s45, s45, 14\ns_add_u32 s46, s46, s45")
    for r in range(NP):
        k(f"buffer_load_dword v{252+r}, v60, s[{R_WS}:{R_WS+3}], s46 offen sc1")
        if NP > 1 and r < NP - 1: k("s_sleep 2")
    k.lab(lp)
    for r in range(NP):
        k(f"""s_waitcnt vmcnt({NP-1})
        v_cmp_gt_u32 vcc, {expect}, v{252+r}
        s_cbranch_vccz {lw}""")
        if NP == 1: k(f"s_sleep {g0.SLP}")
        k(f"buffer_load_dword v{252+r}, v60, s[{R_WS}:{R_WS+3}], s46 offen sc1")
    k(f"""s_add_u32 s47, s47, 1
    s_cmp_ge_u32 s47, {0x20000//NP}
    s_cbranch_scc0 {lp}""")
    k.lab(lw)
    k("s_barrier")
class VQ:
    def __init__(s, k): s.k = k; s.n = 0; s.t = {}
    def add(s, tag, cnt): s.n += cnt; s.t[tag] = s.n
    def wait(s, *tags):
        m = max(s.t[t] for t in tags)
        return f"s_waitcnt vmcnt({s.n - m})"
def arrive(k, idx, cbase, nextlayer=False):
    l = k.newlab("ar")
    k(f"""s_waitcnt vmcnt(0)
    s_barrier
    s_cmp_eq_u32 s{SWAVE}, 0
    s_cbranch_scc0 {l}
    s_mul_i32 s46, s{idx}, {CSTR}
    s_add_u32 s46, s46, s{SL}
    s_add_u32 s46, s46, {WS_CNT + cbase*CSTR + (LSTR if nextlayer else 0)}
    v_and_b32 v60, 63, v0
    v_lshlrev_b32 v60, 14, v60
    v_mov_b32 v61, 1
    s_mov_b64 s[44:45], exec
    s_mov_b64 exec, {(1 << REP) - 1}
    buffer_atomic_add v61, v60, s[{R_WS}:{R_WS+3}], s46 offen sc1
    s_mov_b64 exec, s[44:45]""")
    k.lab(l)

def dbg_wait(k, nw, tag):
    lp = k.newlab("dw"); le = k.newlab("de")
    k(f"v_and_b32 v60, {nw-1}, v0\nv_lshlrev_b32 v60, 7, v60\ns_mov_b32 s47, 0")
    k.lab(lp)
    k(f"""buffer_load_dword v253, v60, s[{R_DBG}:{R_DBG+3}], 0 offen sc1
    s_add_u32 s47, s47, 1
    s_waitcnt vmcnt(0)
    v_cmp_gt_u32 vcc, 16, v253
    s_cmp_ge_u32 s47, 0x20000
    s_cbranch_scc1 {le}
    s_cbranch_vccz {le}
    s_sleep 2
    s_branch {lp}""")
    k.lab(le)
def x_srd(k):
    l = k.newlab("xs")
    k(f"""s_mov_b32 s{R_X}, s{SAX}
    s_mov_b32 s{R_X+1}, s{SAX+1}
    s_mov_b32 s{R_X+2}, {2048*1280}
    s_mov_b32 s{R_X+3}, 0x20000
    s_cmp_eq_u32 s5, 0
    s_cbranch_scc1 {l}
    s_mov_b32 s{R_X}, s{R_WS}
    s_mov_b32 s{R_X+1}, s{R_WS+1}
    s_mov_b32 s{R_X+2}, s{R_WS+2}""")
    k.lab(l)
```

```python
from g0 import *
class LQ:
    def __init__(s, k): s.k = k; s.n = 0; s.tag = {}
    def issue(s, txt, tag):
        s.k(txt); s.n += 1; s.tag[tag] = s.n
    def need(s, *tags):
        m = max(s.tag[t] for t in tags)
        s.k(f"s_waitcnt lgkmcnt({min(15, s.n - m)})")
def emit_att(k, slot=3):
    KS = 6144; VB = 5*KS; VS = 6208
    name = k.newlab("att")
    k(f"""v_and_b32 v1, 63, v0
    s_and_b32 s24, s2, 7
    s_lshr_b32 s25, s2, 3
    s_lshl_b32 s24, s24, 1
    s_and_b32 s26, s25, 1
    s_add_u32 s24, s24, s26
    s_lshr_b32 s25, s25, 1
    s_sub_u32 s26, s25, 2
    s_max_i32 s26, s26, 0
    s_mov_b32 s27, s25""")
    stamp(k, 0)
    k("s_mov_b32 s42, s26\ns_mov_b32 s43, s27")
    k(f"""s_lshr_b32 s26, s3, 2
    s_and_b32 s28, s3, 3
    s_mul_i32 s29, s24, 5
    s_lshl_b32 s27, s29, 1
    s_mul_i32 s30, s26, 5
    s_add_u32 s27, s27, s30""")
    k(f"""s_lshl_b32 s30, s25, 7
    s_lshl_b32 s31, s3, 6
    s_add_u32 s30, s30, s31
    s_sub_u32 s30, s30, 256
    s_max_i32 s30, s30, 0
    s_lshl_b32 s30, s30, 4
    s_add_u32 s31, s29, 80
    s_lshl_b32 s31, s31, 15
    s_add_u32 s30, s30, s31
    v_lshlrev_b32 v3, 4, v1
    v_add_u32 v3, s30, v3""")
    Q0 = 8; Q1 = 12
    k(f"""v_lshrrev_b32 v4, 5, v1
    v_and_b32 v5, 31, v1
    s_lshl_b32 s33, s25, 7
    s_lshl_b32 s34, s28, 5
    s_add_u32 s33, s33, s34
    v_add_u32 v6, s33, v5
    v_lshlrev_b32 v7, 4, v6
    s_mul_i32 s34, s26, 3
    s_add_u32 s36, s34, s29
    v_add_u32 v16, s36, v4
    v_lshlrev_b32 v16, 15, v16
    v_add_u32 v16, v16, v7""")
    k(f"""v_mov_b32 v20, 0x3f803f80
    v_mov_b32 v21, 0x3f803f80
    v_mov_b32 v22, 0x3f803f80
    v_mov_b32 v23, 0x3f803f80
    v_lshlrev_b32 v17, 4, v0
    v_min_u32 v17, {6144-16}, v17
    ds_write_b128 v17, v[20:23] offset:{VB + 5*VS}""")
    k(f"""s_lshl_b32 s38, s28, 9
    v_add_u32 v18, s34, v4
    v_mul_u32_u24 v18, {KS}, v18
    v_lshlrev_b32 v19, 4, v5
    v_add_u32 v19, s38, v19
    v_add_u32 v24, v18, v19
    v_add_u32 v25, {2*KS}, v19
    v_lshrrev_b32 v18, 2, v1
    v_and_b32 v18, 3, v18
    v_lshlrev_b32 v19, 2, v4
    v_add_u32 v18, v18, v19
    v_lshlrev_b32 v18, 4, v18
    v_add_u32 v18, s38, v18
    v_lshrrev_b32 v19, 4, v1
    v_and_b32 v19, 1, v19
    v_lshlrev_b32 v19, 2, v19
    v_and_b32 v27, 3, v1
    v_add_u32 v19, v19, v27
    v_cmp_lt_u32 vcc, 4, v19
    v_cmp_eq_u32 s[44:45], 4, v19
    v_and_b32 v27, 1, v19
    v_lshlrev_b32 v27, 1, v27
    v_lshrrev_b32 v19, 1, v19
    v_and_b32 v19, 1, v19
    v_or_b32 v19, v19, v27
    s_mul_i32 s39, s26, 6
    v_add_u32 v19, s39, v19
    s_add_u32 s39, s26, 4
    v_mov_b32 v27, s39
    v_cndmask_b32 v19, v19, v27, s[44:45]
    v_and_b32 v27, 1, v19
    v_lshrrev_b32 v19, 1, v19
    v_cndmask_b32 v19, v19, 5, vcc
    v_mul_u32_u24 v19, {VS}, v19
    v_lshlrev_b32 v27, 3, v27
    v_add_u32 v18, v18, v19
    v_add_u32 v18, v18, v27
    v_add_u32 v26, {VB}, v18""")
    k("v_lshlrev_b32 v18, 2, v4\nv_sub_u32 v18, v5, v18")
    for x in range(16):
        i, j = divmod(x, 4)
        k(f"v_cmp_gt_i32 s[{48+2*x}:{49+2*x}], {8*i+j}, v18")
    k("v_mov_b32 v19, 0xffff\nv_mov_b32 v27, 0xffff0000")
    for p in range(8):
        k(f"v_cndmask_b32 v36, 0, v19, s[{48+4*p}:{49+4*p}]\nv_cndmask_b32 v37, 0, v27, s[{50+4*p}:{51+4*p}]\nv_or_b32 v{28+p}, v36, v37")
    ldw = k.newlab("adw")
    k(f"s_cmp_eq_u32 s5, 0\ns_cbranch_scc0 {ldw}\ns_cmp_eq_u32 s3, 0\ns_cbranch_scc0 {ldw}")
    dbg_wait(k, 2, name)
    k.lab(ldw)
    poll(k, 42, 43, CQ, 15, name)
    stamp(k, 1)
    ld = k.newlab("ld")
    k(f"""s_add_u32 s36, s29, 2
    s_lshl_b32 s36, s36, 15
    s_add_u32 s37, s5, {WS_QKV}
    s_add_u32 s36, s36, s37
    s_cmp_ge_u32 s3, 6
    s_cbranch_scc1 {ld}
    s_lshl_b32 s31, s3, 10
    s_add_u32 s32, s5, {WS_QKV}""")
    for p in range(5):
        k(f"s_add_u32 m0, s31, {p*KS}\ns_nop 0\nbuffer_load_dwordx4 v3, s[8:11], s32 offen lds\ns_add_u32 s32, s32, {PL}")
    k(f"s_add_u32 s32, s32, {75*PL}")
    for p in range(5):
        k(f"s_add_u32 m0, s31, {VB + p*VS}\ns_nop 0\nbuffer_load_dwordx4 v3, s[8:11], s32 offen lds\ns_add_u32 s32, s32, {PL}")
    k.lab(ld)
    k(f"""buffer_load_dwordx4 v[{Q0}:{Q0+3}], v16, s[8:11], s37 offen
    buffer_load_dwordx4 v[{Q1}:{Q1+3}], v7, s[8:11], s36 offen""")
    k(f"s_lshl_b32 s40, s25, 2\ns_add_u32 s40, s40, s28\ns_sub_u32 s40, 8, s40\ns_max_i32 s40, s40, 0")
    k("s_waitcnt vmcnt(0) lgkmcnt(0)")
    k(f"""v_cmp_eq_u32 vcc, 0, v4
    s_cmp_eq_u32 s26, 1
    s_cselect_b64 s[42:43], 0, vcc
    s_cselect_b64 s[44:45], vcc, 0
    v_cndmask_b32 v{Q1}, 0, v{Q1}, s[42:43]
    v_cndmask_b32 v{Q1+1}, 0, v{Q1+1}, s[42:43]
    v_cndmask_b32 v{Q1+2}, 0, v{Q1+2}, s[44:45]
    v_cndmask_b32 v{Q1+3}, 0, v{Q1+3}, s[44:45]
    s_barrier""")
    stamp(k, 2)
    SB = [64, 80, 96]; KF = [112, 120, 128]; VF = [136, 144, 152]; NM = 160; O = 176; PP = 40; PF = 48; M0 = 38; M1 = 39
    q = LQ(k)
    kslot = {}; nk = [0]
    def rdK(j, ps):
        sl = nk[0] % 3; nk[0] += 1; kslot[(j, ps)] = sl; f = KF[sl]
        q.issue(f"ds_read_b128 v[{f}:{f+3}], v24 offset:{512*j}", ("k", j, ps, 0))
        q.issue(f"ds_read_b128 v[{f+4}:{f+7}], v25 offset:{512*j}", ("k", j, ps, 1))
    def mmS(j, ps, buf):
        f = KF[kslot[(j, ps)]]; d = SB[buf]
        q.need(("k", j, ps, 0), ("k", j, ps, 1))
        c = "0" if ps == 1 else f"v[{NM}:{NM+15}]"
        k(f"v_mfma_f32_32x32x16_bf16 v[{d}:{d+15}], v[{f}:{f+3}], v[{Q0}:{Q0+3}], {c}")
        k(f"v_mfma_f32_32x32x16_bf16 v[{d}:{d+15}], v[{f+4}:{f+7}], v[{Q1}:{Q1+3}], v[{d}:{d+15}]")
    tails = []
    def skipper(j):
        ls = k.newlab("sk"); ln = k.newlab("nx")
        k(f"s_cmp_gt_u32 s40, {j}\ns_cbranch_scc1 {ls}")
        tails.append((ls, ln)); return ln
    def merge():
        l = k.newlab("mg")
        k(f"s_cmp_eq_u32 s40, 0\ns_cbranch_scc1 {l}")
        for x in range(16): k(f"v_mov_b32 v{SB[0]+x}, 0xff61b1e6")
        k.lab(l)
        for x in range(16):
            k(f"v_cndmask_b32 v{SB[0]+x}, v{SB[1]+x}, v{SB[0]+x}, s[{48+2*x}:{49+2*x}]")
    rdK(0, 1); rdK(8, 1); rdK(1, 1)
    mmS(0, 1, 0); mmS(8, 1, 1); rdK(2, 1); mmS(1, 1, 2)
    k("s_nop 7\ns_nop 3")
    merge()
    d = SB[0]
    k(f"v_max3_f32 v{M0}, v{d}, v{d+1}, v{d+2}\nv_max3_f32 v{M1}, v{d+3}, v{d+4}, v{d+5}")
    for p in range(3, 8):
        k(f"v_max3_f32 v{M0 + (p & 1)}, v{M0 + (p & 1)}, v{d+2*p}, v{d+2*p+1}")
    cur = 2
    for j in range(1, 8):
        nxt = 0 if cur != 0 else 1
        if j + 2 <= 7: rdK(j + 2, 1)
        if j + 1 <= 7: mmS(j + 1, 1, nxt)
        else:
            rdK(0, 2); rdK(8, 2); k("s_nop 7")
        ln = skipper(j)
        d = SB[cur]
        for p in range(8):
            k(f"v_max3_f32 v{M0 + (p & 1)}, v{M0 + (p & 1)}, v{d+2*p}, v{d+2*p+1}")
        k.lab(ln)
        cur = nxt
    k(f"""v_max_f32 v{M0}, v{M0}, v{M1}
    v_mov_b32 v{M1}, v{M0}
    s_nop 1
    v_permlane32_swap_b32 v{M0}, v{M1}
    s_nop 1
    v_max_f32 v{M0}, v{M0}, v{M1}""")
    for x in range(16): k(f"v_sub_f32 v{NM+x}, 0, v{M0}")
    stamp(k, 3)
    vslot = {}; nv = [0]
    def rdV(j):
        sl = nv[0] % 3; nv[0] += 1; vslot[j] = sl; f = VF[sl]
        for u in range(2):
            for e in range(2):
                q.issue(f"ds_read_b64_tr_b16 v[{f+4*u+2*e}:{f+4*u+2*e+1}], v26 offset:{512*j+256*u+128*e}", ("v", j, u, e))
    first = [True]
    def pv(j, P):
        f = VF[vslot[j]]
        q.need(*[("v", j, u, e) for u in range(2) for e in range(2)])
        for u in range(2):
            c = "0" if first[0] else f"v[{O}:{O+15}]"
            first[0] = False
            k(f"v_mfma_f32_32x32x16_bf16 v[{O}:{O+15}], v[{f+4*u}:{f+4*u+3}], v[{P+4*u}:{P+4*u+3}], {c}")
    def expcvt(buf):
        d = SB[buf]
        for x in range(16): k(f"v_exp_f32 v{d+x}, v{d+x}")
        for p in range(8): k(f"v_cvt_pk_bf16_f32 v{PP+p}, v{d+2*p}, v{d+2*p+1}")
    rdK(1, 2); rdV(0); rdV(8)
    k("s_nop 1")
    mmS(0, 2, 0); mmS(8, 2, 1); mmS(1, 2, 2); rdK(2, 2); rdV(1)
    k("s_nop 7\ns_nop 3")
    merge()
    expcvt(0)
    for p in range(8):
        k(f"v_and_b32 v{PF+p}, v{PP+p}, v{28+p}")
    for p in range(8):
        k(f"v_xor_b32 v{PP+p}, v{PP+p}, v{PF+p}")
    k("s_nop 1")
    pv(0, PF); pv(8, PP)
    cur = 2
    for j in range(1, 8):
        nxt = 0 if cur != 0 else 1
        if j + 1 <= 7:
            mmS(j + 1, 2, nxt)
            rdV(j + 1)
        if j + 2 <= 7: rdK(j + 2, 2)
        ln = skipper(j)
        expcvt(cur)
        k("s_nop 1")
        pv(j, PP)
        k.lab(ln)
        cur = nxt
    stamp(k, 4)
    XB = 0x18000
    lo = k.newlab("ao"); le = k.newlab("ae")
    k(f"""s_nop 7
    s_nop 7
    v_rcp_f32 v{M0}, v{O+12}
    s_mul_i32 s34, s26, 3
    s_add_u32 s34, s34, s29
    v_add_u32 v18, s34, v4
    v_lshlrev_b32 v18, 15, v18
    v_add_u32 v18, v18, v7
    s_add_u32 s36, s5, {WS_O}
    s_add_u32 s37, s29, 2
    s_lshl_b32 s37, s37, 15
    s_add_u32 s37, s37, s36
    s_lshl_b32 s38, s28, 9
    v_lshlrev_b32 v19, 3, v1
    v_add_u32 v19, s38, v19
    v_add_u32 v19, {XB}, v19""")
    for x in range(12): k(f"v_mul_f32 v{O+x}, v{O+x}, v{M0}")
    for p in range(6): k(f"v_cvt_pk_bf16_f32 v{PP+p}, v{O+2*p}, v{O+2*p+1}")
    k(f"""buffer_store_dwordx4 v[{PP}:{PP+3}], v18, s[8:11], s36 offen{SC1}
    s_cmp_eq_u32 s26, 1
    s_cbranch_scc0 {le}
    ds_write_b64 v19, v[{PP+4}:{PP+5}] offset:0
    s_waitcnt lgkmcnt(0)
    s_barrier
    s_branch {lo}""".replace("v19, v[", f"v19, v["))
    k.lab(le)
    k(f"""s_barrier
    ds_read_b64 v[{PP+6}:{PP+7}], v19
    v_cmp_gt_u32 vcc, 32, v1
    s_and_saveexec_b64 s[42:43], vcc
    s_waitcnt lgkmcnt(0)
    buffer_store_dwordx4 v[{PP+4}:{PP+7}], v7, s[8:11], s37 offen{SC1}
    s_mov_b64 exec, s[42:43]""")
    k.lab(lo)
    stamp(k, 7)
    arrive(k, 25, CA)
    stamp(k, 8)
    stamp_flush(k, slot, 3)
    k.tails = getattr(k, "tails", []) + tails
```

```python
from g0 import *
def dbg_add(k, offs):
    l = k.newlab("da")
    k(f"""s_waitcnt vmcnt(0)
    s_barrier
    s_cmp_eq_u32 s{SWAVE}, 0
    s_cbranch_scc0 {l}
    v_mov_b32 v61, 1
    s_mov_b64 s[44:45], exec
    s_mov_b64 exec, 1""")
    for o in offs: k(f"buffer_atomic_add v61, off, s[{R_DBG}:{R_DBG+3}], 0 offset:{o} sc1")
    k("s_mov_b64 exec, s[44:45]")
    k.lab(l)
def colsum(k, RW, RS, dst, sb):
    l = k.newlab("cs")
    k(f"""v_lshrrev_b32 v3, 4, v0
    v_and_b32 v4, 15, v0
    s_mov_b32 s32, {RS}
    v_mul_lo_u32 v3, v3, s32
    v_lshlrev_b32 v4, 4, v4
    v_add_u32 v3, v3, v4
    s_lshl_b32 s33, s24, 8
    v_add_u32 v3, s33, v3
    s_mov_b32 s37, 0""")
    for i in range(20):
        k(f"buffer_load_dwordx4 v[{64+4*i}:{67+4*i}], v3, s[{RW}:{RW+3}], s37 offen\ns_add_u32 s37, s37, {32*RS}")
    stamp(k, sb)
    for j in range(8): k(f"v_mov_b32 v{16+j}, 0")
    for i in range(20):
        k(f"s_waitcnt vmcnt({19-i})")
        for d in range(4):
            r = 64 + 4*i + d; t = 8 + 2*(d & 1)
            k(f"v_lshlrev_b32 v{t}, 16, v{r}\nv_and_b32 v{t+1}, 0xffff0000, v{r}\nv_pk_add_f32 v[{16+2*d}:{17+2*d}], v[{16+2*d}:{17+2*d}], v[{t}:{t+1}]")
    stamp(k, sb + 1)
    k("v_xor_b32 v6, 16, v1\nv_lshlrev_b32 v6, 2, v6\nv_xor_b32 v7, 32, v1\nv_lshlrev_b32 v7, 2, v7")
    for a in (6, 7):
        for j in range(8): k(f"ds_bpermute_b32 v{24+j}, v{a}, v{16+j}")
        k("s_waitcnt lgkmcnt(0)")
        for j in range(8): k(f"v_add_f32 v{16+j}, v{16+j}, v{24+j}")
    k(f"""s_lshl_b32 s33, s3, 9
    v_and_b32 v10, 15, v1
    v_lshlrev_b32 v10, 5, v10
    v_add_u32 v9, s33, v10
    ds_write_b128 v9, v[16:19]
    ds_write_b128 v9, v[20:23] offset:16
    s_waitcnt lgkmcnt(0)
    s_barrier
    s_cmp_ge_u32 s3, 2
    s_cbranch_scc1 {l}
    v_lshlrev_b32 v9, 2, v0""")
    for w in range(8): k(f"ds_read_b32 v{16+w}, v9 offset:{512*w}")
    k("s_waitcnt lgkmcnt(0)")
    for w in range(1, 8): k(f"v_add_f32 v16, v16, v{16+w}")
    k(f"s_lshl_b32 s34, s24, 9\ns_add_u32 s34, s34, {dst}\nbuffer_store_dword v16, v9, s[8:11], s34 offen sc1")
    k.lab(l)
def emit_aux(k, lab, end):
    k.lab(lab)
    lz = k.newlab("az"); l1 = k.newlab("a1")
    k(f"""s_cmp_eq_u32 s5, 0
    s_cbranch_scc0 {end}
    v_and_b32 v1, 63, v0
    s_sub_u32 s24, s2, 240
    s_and_b32 s33, s24, 7
    s_lshl_b32 s33, s33, 14
    s_lshr_b32 s34, s24, 3
    s_mul_i32 s34, s34, {LSTR}
    s_add_u32 s33, s33, s34
    s_add_u32 s33, s33, {WS_CNT}
    v_lshlrev_b32 v3, 4, v0
    v_mov_b32 v4, 0
    v_mov_b32 v5, 0
    v_mov_b32 v6, 0
    v_mov_b32 v7, 0
    buffer_store_dwordx4 v[4:7], v3, s[8:11], s33 offen sc1
    s_add_u32 s33, s33, 8192
    buffer_store_dwordx4 v[4:7], v3, s[8:11], s33 offen sc1
    s_cmp_eq_u32 s24, 15
    s_cbranch_scc1 {lz}""")
    stamp(k, 0)
    colsum(k, R_WQ, 3840, WS_CS, 1)
    stamp(k, 3)
    dbg_add(k, [0])
    stamp(k, 4)
    k(f"s_cmp_ge_u32 s24, 14\ns_cbranch_scc1 {l1}")
    colsum(k, R_W1, 3456, WS_CS + 8192, 5)
    k.lab(l1)
    dbg_add(k, [128])
    stamp(k, 8)
    stamp_flush(k, 11, 3)
    k(f"s_branch {end}")
    k.lab(lz)
    dbg_add(k, [0, 128])
    k(f"s_branch {end}")
```

```python
from g0 import *
import math
def emit_lng(k, kind, slot=1):
    qkv = kind == 'qkv'
    name = k.newlab(kind)
    RS = 3840 if qkv else 3456
    per = 30 if qkv else 28
    nwg = per * 8
    xoff = WS_XIN if qkv else WS_X1
    soff = WS_SIN if qkv else WS_S1
    outoff = WS_QKV if qkv else WS_H
    csoff = WS_CS if qkv else WS_CS + 8192
    RW = R_WQ if qkv else R_W1
    NST = 10; NS = 4; SLOT = 32768; CSCHK = 30; STL = 131072
    PFA = int(os.environ.get('PFA', 1)); PFB = int(os.environ.get('PFB', 8))
    end = name + "_end"; fin = name + "_fin"
    idle = name + "_aux" if qkv else end
    if qkv: k.auxlabs = (idle, end); x_srd(k)
    RX = R_X if qkv else 8
    k(f"""s_cmp_ge_u32 s2, {nwg}
    s_cbranch_scc1 {idle}
    v_and_b32 v1, 63, v0
    s_and_b32 s24, s2, 7
    s_lshr_b32 s25, s2, 3
    s_mov_b32 s28, s3
    s_lshr_b32 s26, s24, 2
    s_mul_i32 s26, s26, {per}
    s_add_u32 s26, s26, s25
    s_and_b32 s24, s24, 3
    s_lshl_b32 s24, s24, 2
    s_and_b32 s25, s26, 3
    s_add_u32 s24, s24, s25
    s_lshr_b32 s25, s26, 2
    s_mul_i32 s26, s24, 344
    s_lshr_b32 s26, s26, 8
    s_add_u32 s27, s26, 1""")
    stamp(k, 0)
    def dopoll():
        if qkv:
            l = k.newlab("nq")
            k(f"s_cmp_eq_u32 s{SL}, 0\ns_cbranch_scc1 {l}")
            poll(k, 26, 27, CX, 10, name)
            k.lab(l)
        else:
            poll(k, 26, 27, CW, 10, name)
    k(f"s_cmp_ge_u32 s28, 4\ns_cbranch_scc0 {name}_cons")
    k(f"""s_sub_u32 s28, s28, 4
    s_lshl_b32 s29, s24, 11
    s_lshl_b32 s30, s28, 16
    s_add_u32 s29, s29, s30
    v_lshlrev_b32 v3, 4, v1
    v_add_u32 v4, s29, v3
    v_add_u32 v6, {PL - 2048}, v4
    v_lshrrev_b32 v8, 4, v1
    v_and_b32 v9, 15, v1
    v_lshlrev_b32 v10, 2, v8
    v_xor_b32 v9, v9, v10""")
    k("v_mov_b32 v12, v4\nv_mov_b32 v13, v4\nv_mov_b32 v14, v6\nv_mov_b32 v15, v6")
    k(f"s_add_u32 s34, s5, {xoff}\ns_mov_b32 s39, {8*PL}")
    if qkv:
        ln_ = k.newlab("nat")
        k(f"""s_cmp_eq_u32 s5, 0
        s_cbranch_scc0 {ln_}
        s_mov_b32 s34, 0
        s_mov_b32 s39, 128
        s_lshl_b32 s29, s24, 7
        s_lshl_b32 s30, s28, 5
        s_add_u32 s29, s29, s30
        v_lshrrev_b32 v16, 3, v1
        v_and_b32 v17, 7, v1
        v_add_u32 v18, s30, v16
        v_xor_b32 v18, v18, v17
        v_lshlrev_b32 v18, 4, v18
        v_lshlrev_b32 v19, 11, v17
        v_add_u32 v20, v18, v19
        v_add_u32 v21, 65536, v20
        v_add_u32 v16, s29, v16
        v_mul_u32_u24 v16, 1280, v16
        v_lshlrev_b32 v17, 4, v17
        v_add_u32 v12, v16, v17
        v_add_u32 v13, {8*1280}, v12
        v_add_u32 v14, {16*1280}, v12
        v_add_u32 v15, {24*1280}, v12""")
        k.lab(ln_)
    if not qkv:
        k("s_cmp_eq_u32 s25, 13\ns_cselect_b32 s31, 7, 15\nv_and_b32 v9, s31, v9")
    k(f"""s_lshl_b32 s31, s28, 4
    v_add_u32 v8, s31, v8
    s_mov_b32 s32, {RS}
    v_mul_lo_u32 v8, v8, s32
    v_lshlrev_b32 v9, 4, v9
    v_add_u32 v8, v8, v9
    s_lshl_b32 s31, s25, 8
    v_add_u32 v8, s31, v8
    v_add_u32 v9, {4*RS - 1024}, v8
    v_add_u32 v10, {8*RS - 2048}, v8
    v_add_u32 v11, {12*RS - 3072}, v8
    s_lshl_b32 s33, s28, 12
    s_mov_b32 s35, 0""")
    ROT = int(os.environ.get('ROT', 1)) if qkv else 0
    if ROT:
        k(f"""s_and_b32 s36, s25, 1
        s_cmp_eq_u32 s5, 0
        s_cselect_b32 s36, s36, 0
        s_mul_i32 s35, s36, {64*RS}
        s_lshl_b32 s36, s36, 7
        s_add_u32 s34, s34, s36""")
    vq = VQ(k)
    def issueX(st):
        slot = st % NS
        k(f"s_add_u32 m0, s33, {slot*SLOT}\ns_nop 0")
        for q in range(4):
            k(f"buffer_load_dwordx4 v{12+q}, s[{RX}:{RX+3}], s34 offen offset:{1024*q} lds")
        k(f"s_add_u32 s34, s34, s39"); vq.add(("x", st), 4)
    def issueW(st):
        slot = st % NS
        k(f"s_add_u32 m0, s33, {slot*SLOT + 16384}\ns_nop 0")
        for q in range(4):
            k(f"buffer_load_dwordx4 v{8+q}, s[{RW}:{RW+3}], s35 offen offset:{1024*q} lds")
        k(f"s_add_u32 s35, s35, {64*RS}"); vq.add(("w", st), 4)
        if ROT: k(f"s_cmp_eq_u32 s35, {640*RS}\ns_cselect_b32 s35, 0, s35")
    for st in range(NS - 1): issueW(st)
    if qkv:
        import copy
        l1 = k.newlab("l1x")
        k(f"s_cmp_eq_u32 s5, 0\ns_cbranch_scc0 {l1}")
        vq_save = (vq.n, dict(vq.t))
        SA = 64; XR = 128
        for j in range(16): k(f"v_mov_b32 v{SA+j}, 0")
        def ldX(st):
            for q in range(4):
                r = XR + 16*(st % 4) + 4*q
                k(f"buffer_load_dwordx4 v[{r}:{r+3}], v{12+q}, s[{RX}:{RX+3}], s34 offen")
            k("s_add_u32 s34, s34, 128"); vq.add(("x", st), 4)
            if ROT: k("s_cmp_eq_u32 s34, 1280\ns_cselect_b32 s34, 0, s34")
        def wrX(st):
            sl = st % NS
            k(vq.wait(("x", st)))
            for q in range(4):
                r = XR + 16*(st % 4) + 4*q
                k(f"ds_write_b128 v{21 if sl >= 2 else 20}, v[{r}:{r+3}] offset:{(sl & 1)*SLOT + 128*q}")
            for q in range(4 if os.environ.get('NOSTAT') is None else 0):
                for d in range(4):
                    r = XR + 16*(st % 4) + 4*q + d; t = 96 + 2*(d & 1)
                    k(f"""v_lshlrev_b32 v{t}, 16, v{r}
                    v_and_b32 v{t+1}, 0xffff0000, v{r}
                    v_pk_add_f32 v[{SA+2*q}:{SA+2*q+1}], v[{SA+2*q}:{SA+2*q+1}], v[{t}:{t+1}]
                    v_pk_fma_f32 v[{SA+8+2*q}:{SA+9+2*q}], v[{t}:{t+1}], v[{t}:{t+1}], v[{SA+8+2*q}:{SA+9+2*q}]""")
            k("s_waitcnt lgkmcnt(0)")
        for st in range(4): ldX(st)
        wrX(0)
        for st in range(NST):
            k(vq.wait(("w", st)) + "\ns_barrier")
            if st + 3 < NST: issueW(st + 3)
            if st + 1 < NST:
                if st + 4 < NST: ldX(st + 4)
                wrX(st + 1)
        for j in range(4):
            k(f"v_add_f32 v{80+2*j}, v{SA+2*j}, v{SA+2*j+1}\nv_add_f32 v{81+2*j}, v{SA+8+2*j}, v{SA+9+2*j}")
        for b in range(3):
            k(f"v_xor_b32 v22, {1 << b}, v1\nv_lshlrev_b32 v22, 2, v22")
            for j in range(8): k(f"ds_bpermute_b32 v{88+j}, v22, v{80+j}")
            k("s_waitcnt lgkmcnt(0)")
            for j in range(8): k(f"v_add_f32 v{80+j}, v{80+j}, v{88+j}")
        for j in range(8): k(f"v_mul_f32 v{80+j}, 0.5, v{80+j}")
        k(f"""v_lshrrev_b32 v22, 3, v1
        s_lshl_b32 s29, s28, 5
        v_add_u32 v22, s29, v22
        v_lshlrev_b32 v22, 3, v22
        v_add_u32 v22, {STL}, v22""")
        for j in range(4): k(f"ds_write_b64 v22, v[{80+2*j}:{81+2*j}] offset:{64*j}")
        k(f"s_waitcnt lgkmcnt(0)\ns_barrier\ns_branch {fin}")
        k.lab(l1)
        vq.n, vq.t = vq_save
    dopoll()
    for st in range(NS - 1): issueX(st)
    for st in range(NST):
        k(vq.wait(("x", st), ("w", st)) + "\ns_barrier")
        if st + NS - 1 < NST: issueX(st + NS - 1); issueW(st + NS - 1)
    k(f"s_branch {fin}")
    k.lab(name + "_cons")
    ACC = 64; FR = 128; CS = 160; B1 = 192; ST = 208
    k(f"""s_and_b32 s29, s28, 1
    s_lshr_b32 s30, s28, 1
    v_lshrrev_b32 v3, 5, v1
    v_and_b32 v4, 31, v1
    s_lshl_b32 s31, s24, 7
    s_lshl_b32 s32, s29, 6
    s_add_u32 s31, s31, s32
    v_add_u32 v5, s31, v4
    v_lshlrev_b32 v6, 3, v5
    v_mul_u32_u24 v7, {5*16384}, v3
    v_add_u32 v6, v6, v7""")
    k(f"""s_lshl_b32 s33, s25, 7
    s_lshl_b32 s34, s30, 6
    s_add_u32 s33, s33, s34
    v_lshlrev_b32 v7, 2, v3
    v_add_u32 v7, s33, v7
    v_lshlrev_b32 v8, 2, v7
    v_lshlrev_b32 v9, 1, v7
    s_mov_b32 s34, {csoff}""")
    def cs_loads():
        for ft in range(2):
            for i in range(4):
                r = CS + 16*ft + 4*i
                k(f"buffer_load_dwordx4 v[{r}:{r+3}], v8, s[8:11], s34 offen offset:{(32*ft+8*i)*4}")
    if not qkv: cs_loads()
    if not qkv:
        for ft in range(2):
            for i in range(4):
                r = B1 + 8*ft + 2*i
                k(f"buffer_load_dwordx2 v[{r}:{r+1}], v9, s[{R_B1}:{R_B1+3}], 0 offen offset:{(32*ft+8*i)*2}")
    k(f"""v_lshlrev_b32 v10, 11, v3
    s_lshl_b32 s34, s29, 6
    v_add_u32 v11, s34, v4
    v_lshlrev_b32 v11, 4, v11
    v_add_u32 v10, v10, v11
    v_lshrrev_b32 v16, 2, v1
    v_and_b32 v16, 3, v16
    v_lshlrev_b32 v17, 3, v3
    v_add_u32 v17, v17, v16
    v_lshlrev_b32 v17, 8, v17
    s_lshl_b32 s34, s30, 3
    v_lshlrev_b32 v18, 2, v16
    v_xor_b32 v18, s34, v18
    v_lshrrev_b32 v19, 4, v1
    v_and_b32 v19, 1, v19
    v_lshlrev_b32 v19, 1, v19
    v_add_u32 v18, v18, v19
    v_lshrrev_b32 v19, 1, v1
    v_and_b32 v19, 1, v19
    v_add_u32 v18, v18, v19
    v_lshlrev_b32 v18, 4, v18
    v_and_b32 v19, 1, v1
    v_lshlrev_b32 v19, 3, v19
    v_add_u32 v18, v18, v19
    v_add_u32 v11, v17, v18
    v_add_u32 v11, 16384, v11
    v_xor_b32 v12, 64, v11
    v_add_u32 v13, 65536, v10
    v_add_u32 v14, 65536, v11
    v_add_u32 v15, 65536, v12""")
    if qkv:
        lp_ = k.newlab("xp"); lq_ = k.newlab("xq")
        k(f"s_cmp_eq_u32 s5, 0\ns_cbranch_scc1 {lp_}")
        for hi in range(2):
            for ks in range(4):
                for tt in range(2):
                    k(f"v_add_u32 v{32+8*hi+2*ks+tt}, {hi*65536 + ks*4096 + tt*512}, v10")
        k(f"s_branch {lq_}")
        k.lab(lp_)
        k("""s_lshl_b32 s38, s29, 6
        v_add_u32 v16, s38, v4""")
        for ks in range(4):
            k(f"""v_add_u32 v18, {2*ks}, v3
            v_xor_b32 v17, v16, v18
            v_lshlrev_b32 v17, 4, v17
            v_lshlrev_b32 v18, 11, v18
            v_add_u32 v18, v18, v17""")
            for hi in range(2):
                for tt in range(2):
                    k(f"v_add_u32 v{32+8*hi+2*ks+tt}, {hi*65536 + tt*512}, v18")
        k.lab(lq_)
    def reads(gi):
        st, ks = divmod(gi, 4); slot = st % NS
        hi = slot >= 2; base = (slot & 1) * SLOT + ks * 4096
        f = FR + 16 * (gi & 1)
        aX = 13 if hi else 10; aW = (14, 15) if hi else (11, 12)
        L = []
        for ft in range(2):
            L.append(f"ds_read_b64_tr_b16 v[{f+4*ft}:{f+4*ft+1}], v{aW[ft]} offset:{base}")
            L.append(f"ds_read_b64_tr_b16 v[{f+4*ft+2}:{f+4*ft+3}], v{aW[ft]} offset:{base+1024}")
        for tt in range(2):
            if qkv: L.append(f"ds_read_b128 v[{f+8+4*tt}:{f+8+4*tt+3}], v{32+8*hi+2*ks+tt} offset:{(slot & 1)*SLOT}")
            else: L.append(f"ds_read_b128 v[{f+8+4*tt}:{f+8+4*tt+3}], v{aX} offset:{base+512*tt}")
        return [L[0], L[1], L[4], L[2], L[3], L[5]]
    def prefetch(lst_):
        k("s_lshl_b32 s38, s2, 12\nv_and_b32 v52, 255, v0\nv_lshlrev_b32 v52, 4, v52\nv_add_u32 v52, s38, v52")
        for srd, size in lst_:
            n = (size + 983039) // 983040
            for i in range(n):
                k(f"s_mov_b32 s38, {i*983040}\nbuffer_load_dwordx4 v[240:243], v52, s[{srd}:{srd+3}], s38 offen")
    if qkv and PFA:
        lp0 = k.newlab("pfa")
        k(f"s_cmp_eq_u32 s5, 0\ns_cbranch_scc0 {lp0}")
        prefetch([(R_WQ, 640*3840), (R_X, 2048*1280)])
        k.lab(lp0)
    dopoll()
    stamp(k, 1)
    lst = k.newlab("st")
    if qkv: k(f"s_cmp_eq_u32 s5, 0\ns_cbranch_scc1 {lst}")
    for pp in range(5):
        k(f"s_add_u32 s38, s5, {soff + pp*16384}")
        for tt in range(2):
            r = ST + 4*pp + 2*tt
            k(f"buffer_load_dwordx2 v[{r}:{r+1}], v6, s[8:11], s38 offen offset:{256*tt}")
    k.lab(lst)
    k("s_barrier")
    stamp(k, 2)
    for l in reads(0): k(l)
    for gi in range(NST * 4):
        st, ks = divmod(gi, 4)
        f = FR + 16 * (gi & 1)
        k("s_waitcnt lgkmcnt(0)")
        if ks == 3 and st + 1 < NST: k("s_barrier")
        if gi in (3, 19): stamp(k, 3 if gi == 3 else 4)
        if qkv and gi in (7, 11, 27): stamp(k, {7: 13, 11: 9, 27: 10}[gi])
        R = reads(gi + 1) if gi + 1 < NST * 4 else []
        ri = 0
        for mi, (ft, tt) in enumerate([(0, 0), (0, 1), (1, 0), (1, 1)]):
            a = ACC + 32 * ft + 16 * tt
            c = "0" if gi == 0 else f"v[{a}:{a+15}]"
            k(f"v_mfma_f32_32x32x16_bf16 v[{a}:{a+15}], v[{f+4*ft}:{f+4*ft+3}], v[{f+8+4*tt}:{f+8+4*tt+3}], {c}")
            for _ in range(2):
                if ri < len(R): k(R[ri]); ri += 1
        if qkv and gi == PFB:
            lp1 = k.newlab("pfb")
            k(f"s_cmp_eq_u32 s5, 0\ns_cbranch_scc0 {lp1}")
            prefetch([(R_WO, 640*1280), (R_W1, 640*3456), (R_W2, 1728*1280)])
            k.lab(lp1)
        if qkv and gi == CSCHK:
            lc_ = k.newlab("ck")
            k(f"s_cmp_eq_u32 s5, 0\ns_cbranch_scc0 {lc_}")
            stamp(k, 11)
            dbg_wait(k, 1, name)
            stamp(k, 12)
            k.lab(lc_)
            k(f"s_mov_b32 s34, {csoff}")
            cs_loads()
    if not qkv:
        k(f"s_cmp_eq_u32 s25, 13\ns_cselect_b32 s34, s30, 0\ns_cmp_eq_u32 s34, 1\ns_cbranch_scc1 {fin}")
    stamp(k, 5)
    k("s_waitcnt vmcnt(0)")
    stamp(k, 6)
    for pp in range(1, 5):
        k(f"v_pk_add_f32 v[{ST}:{ST+1}], v[{ST}:{ST+1}], v[{ST+4*pp}:{ST+4*pp+1}]\nv_pk_add_f32 v[{ST+2}:{ST+3}], v[{ST+2}:{ST+3}], v[{ST+4*pp+2}:{ST+4*pp+3}]")
    if qkv:
        ls_ = k.newlab("lz")
        k(f"""s_cmp_eq_u32 s5, 0
        s_cbranch_scc0 {ls_}
        s_lshl_b32 s38, s29, 6
        v_add_u32 v20, s38, v4
        v_lshlrev_b32 v20, 3, v20
        v_add_u32 v20, {STL}, v20
        s_barrier
        ds_read_b64 v[{ST}:{ST+1}], v20
        ds_read_b64 v[{ST+2}:{ST+3}], v20 offset:256
        s_waitcnt lgkmcnt(0)""")
        k.lab(ls_)
    for j in range(4): swap_add(k, ST + j, 20)
    sc = 20 ** -0.5 * math.log2(math.e)
    if qkv:
        k(f"s_cmp_lt_u32 s25, 5\ns_cselect_b32 s34, {f2h(sc)}, 1.0")
    k(f"s_mov_b32 s35, {f2h(1/640)}\ns_mov_b32 s36, {f2h(1e-5)}")
    for tt in range(2):
        m = 22 + 4*tt; r = 24 + 4*tt
        k(f"""v_mul_f32 v{m}, s35, v{ST+2*tt}
        v_mul_f32 v20, s35, v{ST+2*tt+1}
        v_fma_f32 v20, -v{m}, v{m}, v20
        v_add_f32 v20, s36, v20
        v_rsq_f32 v{r}, v20
        s_nop 0""")
        if qkv: k(f"v_mul_f32 v{r}, s34, v{r}")
    if not qkv:
        for ft in range(2):
            for i in range(4):
                r = B1 + 8*ft + 2*i; d = 224 + 16*ft + 4*i
                k(f"v_lshlrev_b32 v{d}, 16, v{r}\nv_and_b32 v{d+1}, 0xffff0000, v{r}\nv_lshlrev_b32 v{d+2}, 16, v{r+1}\nv_and_b32 v{d+3}, 0xffff0000, v{r+1}")
    k(f"""v_lshlrev_b32 v30, 15, v3
    v_lshlrev_b32 v31, 4, v5
    v_add_u32 v30, v30, v31
    s_lshr_b32 s37, s33, 3
    s_lshl_b32 s37, s37, 15
    s_add_u32 s37, s37, s5
    s_add_u32 s37, s37, {outoff}""")
    T = 32
    n = 0
    for ft in range(2):
        for i2 in range(2):
            for tt in range(2):
                a = ACC + 32*ft + 16*tt + 8*i2; cs = CS + 16*ft + 8*i2; m = 22 + 4*tt; r = 24 + 4*tt
                t = T + 4 * (n % 4); n += 1
                for p in range(4):
                    x = a + 2*p
                    k(f"v_pk_fma_f32 v[{x}:{x+1}], v[{m}:{m+1}], v[{cs+2*p}:{cs+2*p+1}], v[{x}:{x+1}] op_sel_hi:[0,1,1] neg_lo:[1,0,0] neg_hi:[1,0,0]")
                for p in range(4):
                    x = a + 2*p
                    if qkv:
                        k(f"v_pk_mul_f32 v[{x}:{x+1}], v[{r}:{r+1}], v[{x}:{x+1}] op_sel_hi:[0,1]")
                    else:
                        b = 224 + 16*ft + 8*i2 + 2*p
                        k(f"v_pk_fma_f32 v[{x}:{x+1}], v[{r}:{r+1}], v[{x}:{x+1}], v[{b}:{b+1}] op_sel_hi:[0,1,1]")
                if not qkv:
                    for p in range(8): k(f"v_max_f32 v{a+p}, 0, v{a+p}")
                    for p in range(4):
                        x = a + 2*p
                        k(f"v_pk_mul_f32 v[{x}:{x+1}], v[{x}:{x+1}], v[{x}:{x+1}]")
                for p in range(4):
                    k(f"v_cvt_pk_bf16_f32 v{t+p}, v{a+2*p}, v{a+2*p+1}")
                k(f"s_nop 1\nv_permlane32_swap_b32 v{t}, v{t+2}\nv_permlane32_swap_b32 v{t+1}, v{t+3}")
                k(f"s_nop 0\nbuffer_store_dwordx4 v[{t}:{t+3}], v30, s[8:11], s37 offen offset:{512*tt}{SC1}")
            k(f"s_add_u32 s37, s37, {2*PL}")
    stamp(k, 7)
    k.lab(fin)
    arrive(k, 24, CQ if qkv else CH)
    stamp(k, 8)
    stamp_flush(k, slot, 3)
    k.lab(end)

import struct
def f2h(x):
    return "0x%08x" % struct.unpack("<I", struct.pack("<f", x))[0]
```

```python
from g0 import *
def emit_rg(k, kind, slot=2):
    wo = kind == 'wo'
    name = k.newlab(kind)
    NST = 10 if wo else 27
    NS = 6; SLOT = 20480; RS = 1280
    xoff = WS_O if wo else WS_H
    resoff = WS_XIN if wo else WS_X1
    outoff = WS_X1 if wo else WS_XIN + LSTR
    soff = WS_S1 if wo else WS_SIN + LSTR
    RW = R_WO if wo else R_W2
    end = name + "_end"; fin = name + "_fin"
    k(f"""s_and_b32 s24, s2, 7
    s_lshr_b32 s25, s2, 3
    s_cmp_ge_u32 s25, 28
    s_cbranch_scc1 {end}
    v_and_b32 v1, 63, v0
    s_mov_b32 s28, s3
    s_mul_i32 s26, s24, 28
    s_add_u32 s26, s26, s25
    s_cmp_ge_u32 s26, 220
    s_cbranch_scc1 {end}
    s_mul_i32 s24, s26, 6554
    s_lshr_b32 s24, s24, 16
    s_mul_i32 s25, s24, 10
    s_sub_u32 s25, s26, s25
    s_mul_i32 s42, s24, 3
    s_add_u32 s43, s42, 2
    s_lshr_b32 s42, s42, 2
    s_lshr_b32 s43, s43, 2
    s_min_u32 s43, s43, 15""")
    stamp(k, 0)
    def dopoll(): poll(k, 42, 43, CA if wo else CH, 16 if wo else 14, name)
    k(f"s_cmp_ge_u32 s28, 4\ns_cbranch_scc0 {name}_cons")
    k(f"""s_sub_u32 s28, s28, 4
    s_mul_i32 s29, s28, 192
    s_mul_i32 s30, s24, 96
    s_mov_b32 s31, 683
    s_mov_b32 s32, 96
    s_cmp_eq_u32 s24, 21
    s_cselect_b32 s38, 31, 127""")
    for q in range(3):
        k(f"""v_add_u32 v3, s29, v1
        v_add_u32 v3, {64*q}, v3
        v_mul_lo_u32 v4, v3, s31
        v_lshrrev_b32 v4, 16, v4
        v_mul_lo_u32 v5, v4, s32
        v_sub_u32 v5, v3, v5
        v_and_b32 v5, s38, v5
        v_add_u32 v5, s30, v5
        v_lshlrev_b32 v5, 4, v5
        v_lshlrev_b32 v4, 15, v4
        v_add_u32 v5, v5, v4
        v_subrev_u32 v{8+q}, {1024*q}, v5""")
    k(f"""v_lshrrev_b32 v3, 3, v1
    s_lshl_b32 s31, s28, 4
    v_add_u32 v3, s31, v3
    s_mov_b32 s32, {RS}
    v_mul_lo_u32 v3, v3, s32
    v_and_b32 v4, 7, v1
    v_lshrrev_b32 v5, 4, v1
    v_and_b32 v5, 1, v5
    v_lshlrev_b32 v5, 2, v5
    v_xor_b32 v4, v4, v5
    v_lshlrev_b32 v4, 4, v4
    v_add_u32 v3, v3, v4
    s_lshl_b32 s31, s25, 7
    v_add_u32 v11, s31, v3
    v_add_u32 v12, {8*RS - 1024}, v11
    s_mul_i32 s33, s28, 3072
    s_lshl_b32 s36, s28, 11
    s_add_u32 s36, s36, 12288
    s_add_u32 s34, s5, {xoff}
    s_mov_b32 s35, 0""")
    vq = VQ(k)
    def issueX(st):
        sl = st % NS
        k(f"s_add_u32 m0, s33, {sl*SLOT}\ns_nop 0")
        for q in range(3):
            k(f"buffer_load_dwordx4 v{8+q}, s[8:11], s34 offen offset:{1024*q} lds")
        k(f"s_add_u32 s34, s34, {8*PL}"); vq.add(("x", st), 3)
    def issueW(st):
        sl = st % NS
        k(f"s_add_u32 m0, s36, {sl*SLOT}\ns_nop 0")
        for q in range(2):
            k(f"buffer_load_dwordx4 v{11+q}, s[{RW}:{RW+3}], s35 offen offset:{1024*q} lds")
        k(f"s_add_u32 s35, s35, {64*RS}"); vq.add(("w", st), 2)
    for st in range(NS - 1): issueW(st)
    dopoll()
    for st in range(NS - 1): issueX(st)
    for st in range(NST):
        k(vq.wait(("x", st), ("w", st)) + "\ns_barrier")
        if st + NS - 1 < NST: issueX(st + NS - 1); issueW(st + NS - 1)
    k(f"s_branch {fin}")
    k.lab(name + "_cons")
    lc = name + "_c3"
    k(f"s_cmp_eq_u32 s28, 3\ns_cbranch_scc0 {lc}")
    for st in range(NST + 1): k("s_barrier")
    k(f"s_branch {fin}")
    k.lab(lc)
    ACC = 128; FR = 64; RES = 16; B2 = 112
    k(f"""v_lshrrev_b32 v3, 5, v1
    v_and_b32 v4, 31, v1
    s_mul_i32 s31, s24, 96
    s_lshl_b32 s32, s28, 5
    s_add_u32 s31, s31, s32
    v_add_u32 v5, s31, v4
    v_lshlrev_b32 v6, 4, v5
    v_lshlrev_b32 v7, 3, v3
    v_add_u32 v6, v6, v7
    s_lshl_b32 s33, s25, 18
    s_add_u32 s33, s33, s5
    s_add_u32 s33, s33, {resoff}""")
    k(f"s_mov_b32 s39, {PL}")
    RR = R_X if wo else 8
    if wo:
        x_srd(k)
        ln_ = k.newlab("rn")
        k(f"""s_cmp_eq_u32 s5, 0
        s_cbranch_scc0 {ln_}
        v_mul_u32_u24 v6, 1280, v5
        v_add_u32 v6, v6, v7
        s_lshl_b32 s33, s25, 7
        s_mov_b32 s39, 16""")
        k.lab(ln_)
    lr = name + "_nr"; lb = name + "_nb"
    k(f"s_cmp_ge_u32 s31, 2048\ns_cselect_b32 s37, 1, 0")
    if not wo:
        k(f"v_lshlrev_b32 v7, 3, v3\ns_lshl_b32 s34, s25, 7\nv_add_u32 v7, s34, v7")
        for ft in range(2):
            for i in range(4):
                r = B2 + 8*ft + 2*i
                k(f"buffer_load_dwordx2 v[{r}:{r+1}], v7, s[{R_B2}:{R_B2+3}], 0 offen offset:{(32*ft+8*i)*2}")
    k(f"""v_mul_u32_u24 v8, 1536, v3
    s_lshl_b32 s34, s28, 5
    v_add_u32 v9, s34, v4
    v_lshlrev_b32 v9, 4, v9
    v_add_u32 v8, v8, v9
    v_lshrrev_b32 v14, 2, v1
    v_and_b32 v14, 3, v14
    v_lshlrev_b32 v15, 3, v3
    v_add_u32 v15, v15, v14
    v_lshlrev_b32 v15, 7, v15
    v_lshrrev_b32 v14, 1, v14
    v_lshlrev_b32 v14, 2, v14
    v_lshrrev_b32 v9, 4, v1
    v_and_b32 v9, 1, v9
    v_lshlrev_b32 v9, 1, v9
    v_add_u32 v14, v14, v9
    v_lshrrev_b32 v9, 1, v1
    v_and_b32 v9, 1, v9
    v_add_u32 v14, v14, v9
    v_lshlrev_b32 v14, 4, v14
    v_and_b32 v9, 1, v1
    v_lshlrev_b32 v9, 3, v9
    v_add_u32 v14, v14, v9
    v_add_u32 v9, v15, v14
    v_add_u32 v9, 12288, v9
    v_xor_b32 v10, 64, v9
    v_add_u32 v11, {3*SLOT}, v8
    v_add_u32 v12, {3*SLOT}, v9
    v_add_u32 v13, {3*SLOT}, v10""")
    def reads(gi):
        st, hf = divmod(gi, 2); sl = st % NS
        hi = sl >= 3; base = (sl % 3) * SLOT
        f = FR + 24 * (gi & 1)
        aX = 11 if hi else 8; aW = (12, 13) if hi else (9, 10)
        L = []
        for kk in range(2):
            ks = 2*hf + kk; ff = f + 12*kk
            L.append(f"ds_read_b64_tr_b16 v[{ff}:{ff+1}], v{aW[0]} offset:{base+ks*2048}")
            L.append(f"ds_read_b64_tr_b16 v[{ff+2}:{ff+3}], v{aW[0]} offset:{base+ks*2048+512}")
            L.append(f"ds_read_b128 v[{ff+8}:{ff+11}], v{aX} offset:{base+ks*3072}")
            L.append(f"ds_read_b64_tr_b16 v[{ff+4}:{ff+5}], v{aW[1]} offset:{base+ks*2048}")
            L.append(f"ds_read_b64_tr_b16 v[{ff+6}:{ff+7}], v{aW[1]} offset:{base+ks*2048+512}")
        return L
    dopoll()
    stamp(k, 1)
    k(f"s_cmp_eq_u32 s37, 1\ns_cbranch_scc1 {lr}")
    for ft in range(2):
        for i in range(4):
            r = RES + 8*ft + 2*i
            k(f"buffer_load_dwordx2 v[{r}:{r+1}], v6, s[{RR}:{RR+3}], s33 offen\ns_add_u32 s33, s33, s39")
    k.lab(lr)
    k("s_barrier")
    stamp(k, 2)
    for l in reads(0): k(l)
    for gi in range(NST * 2):
        st, hf = divmod(gi, 2)
        f = FR + 24 * (gi & 1)
        k("s_waitcnt lgkmcnt(0)")
        if hf == 1 and st + 1 < NST: k("s_barrier")
        R = reads(gi + 1) if gi + 1 < NST * 2 else []
        ri = 0
        for mi, (kk, ft) in enumerate([(0, 0), (0, 1), (1, 0), (1, 1)]):
            a = ACC + 16 * ft; ff = f + 12*kk
            c = "0" if (gi == 0 and kk == 0) else f"v[{a}:{a+15}]"
            k(f"v_mfma_f32_32x32x16_bf16 v[{a}:{a+15}], v[{ff+4*ft}:{ff+4*ft+3}], v[{ff+8}:{ff+11}], {c}")
            for _ in range(3):
                if ri < len(R): k(R[ri]); ri += 1
    stamp(k, 5)
    k(f"s_cmp_eq_u32 s37, 1\ns_cbranch_scc1 {fin}")
    k("s_waitcnt vmcnt(0)\ns_nop 7\ns_nop 3")
    stamp(k, 6)
    T = 64
    for ft in range(2):
        for i in range(4):
            r = RES + 8*ft + 2*i; a = ACC + 16*ft + 4*i; t = T + 4*(i & 1)
            k(f"""v_lshlrev_b32 v{t}, 16, v{r}
            v_and_b32 v{t+1}, 0xffff0000, v{r}
            v_lshlrev_b32 v{t+2}, 16, v{r+1}
            v_and_b32 v{t+3}, 0xffff0000, v{r+1}
            v_pk_add_f32 v[{a}:{a+1}], v[{a}:{a+1}], v[{t}:{t+1}]
            v_pk_add_f32 v[{a+2}:{a+3}], v[{a+2}:{a+3}], v[{t+2}:{t+3}]""")
            if not wo:
                b = B2 + 8*ft + 2*i; t = T + 8 + 4*(i & 1)
                k(f"""v_lshlrev_b32 v{t}, 16, v{b}
                v_and_b32 v{t+1}, 0xffff0000, v{b}
                v_lshlrev_b32 v{t+2}, 16, v{b+1}
                v_and_b32 v{t+3}, 0xffff0000, v{b+1}
                v_pk_add_f32 v[{a}:{a+1}], v[{a}:{a+1}], v[{t}:{t+1}]
                v_pk_add_f32 v[{a+2}:{a+3}], v[{a+2}:{a+3}], v[{t+2}:{t+3}]""")
    cv = []
    n = 0
    for ft in range(2):
        for i2 in range(2):
            a = ACC + 16*ft + 8*i2; t = T + 16 + 4*n; n += 1
            for p in range(4):
                k(f"v_cvt_pk_bf16_f32 v{t+p}, v{a+2*p}, v{a+2*p+1}")
            k(f"s_nop 1\nv_permlane32_swap_b32 v{t}, v{t+2}\nv_permlane32_swap_b32 v{t+1}, v{t+3}")
            cv.append((ft, i2, t))
    if not wo:
        lf = name + "_nf"
        k(f"""s_cmp_eq_u32 s5, 0
        s_cbranch_scc1 {lf}
        s_mov_b32 s34, 1280
        v_mul_lo_u32 v14, v5, s34
        v_lshlrev_b32 v15, 4, v3
        v_add_u32 v14, v14, v15
        s_lshl_b32 s34, s25, 7""")
        for ft, i2, t in cv:
            k(f"buffer_store_dwordx4 v[{t}:{t+3}], v14, s[{R_OUT}:{R_OUT+3}], s34 offen offset:{(32*ft+16*i2)*2}")
        stamp(k, 7); stamp_flush(k, slot, 3)
        k("s_endpgm")
        k.lab(lf)
    k(f"""v_lshlrev_b32 v14, 15, v3
    v_lshlrev_b32 v15, 4, v5
    v_add_u32 v14, v14, v15
    s_lshl_b32 s34, s25, 18
    s_add_u32 s34, s34, s5
    s_add_u32 s34, s34, {outoff}""")
    for ft, i2, t in cv:
        k(f"buffer_store_dwordx4 v[{t}:{t+3}], v14, s[8:11], s34 offen{SC1}\ns_add_u32 s34, s34, {2*PL}")
    k(f"v_pk_add_f32 v[100:101], v[{ACC}:{ACC+1}], v[{ACC+2}:{ACC+3}]\nv_pk_mul_f32 v[102:103], v[{ACC}:{ACC+1}], v[{ACC}:{ACC+1}]\nv_pk_fma_f32 v[102:103], v[{ACC+2}:{ACC+3}], v[{ACC+2}:{ACC+3}], v[102:103]")
    for p in range(2, 16):
        x = ACC + 2*p
        k(f"v_pk_add_f32 v[100:101], v[100:101], v[{x}:{x+1}]\nv_pk_fma_f32 v[102:103], v[{x}:{x+1}], v[{x}:{x+1}], v[102:103]")
    k("v_add_f32 v100, v100, v101\nv_add_f32 v101, v102, v103")
    swap_add(k, 100, 104); swap_add(k, 101, 104)
    k(f"""v_lshlrev_b32 v15, 3, v4
    s_lshl_b32 s35, s31, 3
    s_lshl_b32 s36, s25, 14
    s_add_u32 s35, s35, s36
    s_add_u32 s35, s35, s5
    s_add_u32 s35, s35, {soff}
    v_cmp_gt_u32 vcc, 32, v1
    s_and_saveexec_b64 s[40:41], vcc
    buffer_store_dwordx2 v[100:101], v15, s[8:11], s35 offen{SC1}
    s_mov_b64 exec, s[40:41]""")
    stamp(k, 7)
    k.lab(fin)
    if not wo:
        le = name + "_le"
        k(f"s_cmp_eq_u32 s5, 0\ns_cbranch_scc1 {le}\ns_endpgm")
        k.lab(le)
    arrive(k, 24, CW if wo else CX, nextlayer=not wo)
    stamp(k, 8)
    stamp_flush(k, slot, 3)
    k.lab(end)
```

```python
import sys
sys.path.insert(0, "exp")
from g0 import *
import g0, g_lng, g_rg, g_att, g_aux
def gen_main():
    k = Kern("main", 256, int(os.environ.get("LDS", 163840)), vgpr=256, sgpr=102)
    k("s_cmp_ge_u32 s2, 256\ns_cbranch_scc1 main_end")
    k.srd(R_WS, 80, WS_SIZE); k.srd(R_WQ, 8, 640*3840); k.srd(R_WO, 16, 640*1280); k.srd(R_W1, 32, 640*3456)
    k.srd(R_W2, 48, 1728*1280); k.srd(R_B1, 40, 3456); k.srd(R_B2, 56, 1280); k.srd(R_OUT, 64, 2048*1280); k.srd(R_DBG, 72, 256)
    k(f"s_load_dwordx2 s[{SAX}:{SAX+1}], s[0:1], 0")
    k("v_lshrrev_b32 v2, 6, v0\ns_nop 1\nv_readfirstlane_b32 s3, v2\ns_mov_b32 s5, 0\nv_mov_b32 v59, 0")
    k.srd_fin()
    k.lab("main_loop")
    g_lng.emit_lng(k, "qkv", 1)
    g_att.emit_att(k, 2)
    g_rg.emit_rg(k, "wo", 3)
    g_lng.emit_lng(k, "w1", 4)
    g_rg.emit_rg(k, "w2", 5)
    k(f"s_cmp_eq_u32 s5, 0\ns_cbranch_scc0 main_end\ns_mov_b32 s5, {LSTR}\ns_branch main_loop")
    k.lab("main_end")
    k("s_endpgm")
    g_aux.emit_aux(k, *k.auxlabs)
    for ls, ln in k.tails:
        k.lab(ls)
        k(f"s_nop 7\ns_nop 7\ns_branch {ln}")
    return k
def build(path):
    emit_file(path, [gen_main()], ["main"])
if __name__ == "__main__":
    g0.PROF = len(sys.argv) > 2 and sys.argv[2] == "prof"
    build(sys.argv[1] if len(sys.argv) > 1 else "k.s")
```

```python
KN = "interleave_layers__sliding_block__dense_activation_squared_relu__prompt"
PL = 32768
LSTR = 0x1800000
WS_QKV = 0x0; WS_O = 0x780000; WS_H = 0xA00000; WS_X1 = 0x10C0000; WS_XIN = 0x1340000
WS_S1 = 0x15C0000; WS_SIN = 0x15E8000
WS_CS = 0x1700000
WS_CNT = 0x1710000
CQ = 0; CA = 16; CW = 32; CH = 64; CX = 96
WS_X0 = WS_XIN; WS_S0 = WS_SIN
WS_SIZE = 0x6000000
SC1 = " sc1"

class Kern:
    def __init__(s, name, grid, lds, vgpr=256, sgpr=100):
        s.name = name; s.grid = grid; s.lds = lds; s.vgpr = vgpr; s.sgpr = sgpr
        s.L = []; s.n = 0
    def __call__(s, txt):
        for ln in txt.strip("\n").split("\n"):
            s.L.append("  " + ln.strip())
    def lab(s, l): s.L.append(l + ":")
    def newlab(s, p="L"):
        s.n += 1; return f"{s.name}_{p}{s.n}"
    def text(s):
        n = s.name + "_kernel"
        return f".globl {n}\n.p2align 8\n.type {n},@function\n{n}:\n" + "\n".join(s.L) + "\n"
    def desc(s):
        n = s.name + "_kernel"
        return f""".p2align 6
.amdhsa_kernel {n}
  .amdhsa_next_free_vgpr {s.vgpr}
  .amdhsa_next_free_sgpr {s.sgpr}
  .amdhsa_accum_offset {((s.vgpr + 3) // 4) * 4}
  .amdhsa_group_segment_fixed_size 0
  .amdhsa_kernarg_size 88
  .amdhsa_user_sgpr_count 2
  .amdhsa_user_sgpr_kernarg_segment_ptr 1
  .amdhsa_system_sgpr_workgroup_id_x 1
.end_amdhsa_kernel
"""
    def srd(s, d, argoff, size):
        s(f"s_load_dwordx2 s[{d}:{d+1}], s[0:1], {argoff}")
        s._srds = getattr(s, "_srds", []) + [(d, size)]
    def srd_fin(s):
        s("s_waitcnt lgkmcnt(0)")
        for d, size in s._srds:
            s(f"s_mov_b32 s{d+2}, {size}\ns_mov_b32 s{d+3}, 0x20000")
        s._srds = []

def emit_file(path, kerns, order):
    hdr = "; generated by exp/gen.py (hand-written generator)\n"
    byname = {k.name: k for k in kerns}
    for nm in order:
        k = byname[nm]
        hdr += f"; @launch kernel={k.name}_kernel grid=({k.grid},1,1) block=(512,1,1) lds={k.lds}\n"
    s = hdr + '.amdgcn_target "amdgcn-amd-amdhsa--gfx950"\n.text\n'
    for k in kerns: s += k.text()
    s += '.section .rodata,"a"\n'
    for k in kerns: s += k.desc()
    open(path, "w").write(s)

def swap_add(k, a, t):
    k(f"v_mov_b32 v{t}, v{a}\ns_nop 1\nv_permlane32_swap_b32 v{a}, v{t}\ns_nop 1\nv_add_f32 v{a}, v{a}, v{t}")

PROF = False
WS_PROF = 0x5000000
def stampc(k, idx, sreg=100):
    import g0
    if not g0.PROF: return
    k(f"s_memtime s[{sreg}:{sreg+1}]\ns_waitcnt lgkmcnt(0)\nv_writelane_b32 v59, s{sreg}, {idx}")
def stamp(k, idx, sreg=100):
    import g0
    if not g0.PROF: return
    k(f"s_memrealtime s[{sreg}:{sreg+1}]\ns_waitcnt lgkmcnt(0)\nv_writelane_b32 v59, s{sreg}, {idx}")
def stamp_flush(k, slot, wave_sreg, wavesel=0):
    import g0
    if not g0.PROF: return
    l = k.newlab("pf")
    k(f"""s_cmp_eq_u32 s{wave_sreg}, {wavesel}
    s_cbranch_scc0 {l}
    v_and_b32 v58, 63, v0
    v_lshlrev_b32 v58, 2, v58
    s_lshl_b32 s100, s2, 8
    s_add_u32 s100, s100, {WS_PROF + slot*65536}
    s_cmp_eq_u32 s5, 0
    s_cselect_b32 s101, 0, {5*65536}
    s_add_u32 s100, s100, s101
    v_cmp_gt_u32 vcc, 64, v58
    s_and_saveexec_b64 s[44:45], vcc
    buffer_store_dword v59, v58, s[8:11], s100 offen
    s_mov_b64 exec, s[44:45]
    s_nop 4
    v_mov_b32 v59, 0""")
    k.lab(l)

def PROFON():
    import g0
    return g0.PROF

SID = 2; SWAVE = 3; SL = 5
R_WS = 8; R_WQ = 12; R_WO = 16; R_W1 = 20; R_W2 = 84; R_B1 = 88; R_B2 = 92; R_OUT = 96; R_DBG = 80; R_X = 48; SAX = 6
import os
CSTR = int(os.environ.get('CSTR', 128))
NPOLL = int(os.environ.get('NPOLL', 1))
REP = int(os.environ.get('REP', 8))
SLP = int(os.environ.get('SLP', 2))
def poll(k, first, last, cbase, expect, tag):
    import g0
    lw = k.newlab("pw"); lp = k.newlab("pl")
    NP = g0.NPOLL
    k(f"""s_cmp_eq_u32 s{SWAVE}, 0
    s_cbranch_scc0 {lw}
    v_and_b32 v60, 63, v0
    v_add_u32 v60, s{first}, v60
    v_min_u32 v60, s{last}, v60
    v_mul_u32_u24 v60, {g0.CSTR}, v60
    s_add_u32 s46, s{SL}, {WS_CNT + cbase*g0.CSTR}
    s_mov_b32 s47, 0""")
    if g0.REP > 1: k(f"s_and_b32 s45, s2, {g0.REP-1}\ns_lshl_b32 s45, s45, 14\ns_add_u32 s46, s46, s45")
    for r in range(NP):
        k(f"buffer_load_dword v{252+r}, v60, s[{R_WS}:{R_WS+3}], s46 offen sc1")
        if NP > 1 and r < NP - 1: k("s_sleep 2")
    k.lab(lp)
    for r in range(NP):
        k(f"""s_waitcnt vmcnt({NP-1})
        v_cmp_gt_u32 vcc, {expect}, v{252+r}
        s_cbranch_vccz {lw}""")
        if NP == 1 and g0.SLP >= 0: k(f"s_sleep {g0.SLP}")
        k(f"buffer_load_dword v{252+r}, v60, s[{R_WS}:{R_WS+3}], s46 offen sc1")
    k(f"""s_add_u32 s47, s47, 1
    s_cmp_ge_u32 s47, {0x20000//NP}
    s_cbranch_scc0 {lp}""")
    k.lab(lw)
    k("s_barrier")
class VQ:
    def __init__(s, k): s.k = k; s.n = 0; s.t = {}
    def add(s, tag, cnt): s.n += cnt; s.t[tag] = s.n
    def wait(s, *tags):
        m = max(s.t[t] for t in tags)
        return f"s_waitcnt vmcnt({s.n - m})"
def arrive(k, idx, cbase, nextlayer=False, nowait=None):
    l = k.newlab("ar")
    k("s_waitcnt vmcnt(0)")
    if nowait: k.lab(nowait)
    k(f"""s_barrier
    s_cmp_eq_u32 s{SWAVE}, 0
    s_cbranch_scc0 {l}
    s_mul_i32 s46, s{idx}, {CSTR}
    s_add_u32 s46, s46, s{SL}
    s_add_u32 s46, s46, {WS_CNT + cbase*CSTR + (LSTR if nextlayer else 0)}
    v_and_b32 v60, 63, v0
    v_lshlrev_b32 v60, 14, v60
    v_mov_b32 v61, 1
    s_mov_b64 s[44:45], exec
    s_mov_b64 exec, {(1 << REP) - 1}
    buffer_atomic_add v61, v60, s[{R_WS}:{R_WS+3}], s46 offen sc1
    s_mov_b64 exec, s[44:45]""")
    k.lab(l)

def dbg_wait(k, nw, tag):
    lp = k.newlab("dw"); le = k.newlab("de")
    k(f"v_and_b32 v60, {nw-1}, v0\nv_lshlrev_b32 v60, 7, v60\ns_mov_b32 s47, 0")
    k.lab(lp)
    k(f"""buffer_load_dword v253, v60, s[{R_DBG}:{R_DBG+3}], 0 offen sc1
    s_add_u32 s47, s47, 1
    s_waitcnt vmcnt(0)
    v_cmp_gt_u32 vcc, 16, v253
    s_cmp_ge_u32 s47, 0x20000
    s_cbranch_scc1 {le}
    s_cbranch_vccz {le}
    {"s_sleep 2" if SLP >= 0 else ""}
    s_branch {lp}""")
    k.lab(le)
def x_srd(k):
    l = k.newlab("xs")
    k(f"""s_mov_b32 s{R_X}, s{SAX}
    s_mov_b32 s{R_X+1}, s{SAX+1}
    s_mov_b32 s{R_X+2}, {2048*1280}
    s_mov_b32 s{R_X+3}, 0x20000
    s_cmp_eq_u32 s5, 0
    s_cbranch_scc1 {l}
    s_mov_b32 s{R_X}, s{R_WS}
    s_mov_b32 s{R_X+1}, s{R_WS+1}
    s_mov_b32 s{R_X+2}, s{R_WS+2}""")
    k.lab(l)

def pf_lin(k, srd, n, lim):
    l = k.newlab("pfl")
    k(f"""s_lshr_b32 s29, s2, 3
    s_cmp_ge_u32 s29, {lim}
    s_cbranch_scc1 {l}
    s_mul_i32 s29, s29, {n*4096}
    s_lshl_b32 s30, s28, 10
    s_add_u32 s29, s29, s30
    v_lshlrev_b32 v16, 4, v1""")
    for j in range(n):
        k(f"buffer_load_dwordx4 v[240:243], v16, s[{srd}:{srd+3}], s29 offen")
        if j < n - 1: k("s_add_u32 s29, s29, 4096")
    k.lab(l)
def pf_cols(k, srd, stride):
    l = k.newlab("pfc")
    k(f"""s_lshr_b32 s29, s2, 3
    s_cmp_ge_u32 s29, 23
    s_cbranch_scc1 {l}
    s_mul_i32 s29, s29, 28
    s_lshr_b32 s30, s28, 1
    s_add_u32 s29, s29, s30
    s_mul_i32 s29, s29, {stride}
    s_and_b32 s30, s28, 1
    s_lshl_b32 s30, s30, 10
    s_add_u32 s29, s29, s30
    s_bfe_u32 s30, s2, 0x10002
    s_mul_i32 s30, s30, 1792
    s_add_u32 s29, s29, s30
    v_lshlrev_b32 v16, 4, v1""")
    for j in range(14):
        k(f"buffer_load_dwordx4 v[240:243], v16, s[{srd}:{srd+3}], s29 offen")
        if j < 13: k(f"s_add_u32 s29, s29, {2*stride}")
    k.lab(l)
```

```python
from g0 import *
import math
def emit_lng(k, kind, slot=1):
    qkv = kind == 'qkv'
    name = k.newlab(kind)
    RS = 3840 if qkv else 3456
    per = 30 if qkv else 28
    nwg = per * 8
    xoff = WS_XIN if qkv else WS_X1
    soff = WS_SIN if qkv else WS_S1
    outoff = WS_QKV if qkv else WS_H
    csoff = WS_CS if qkv else WS_CS + 8192
    RW = R_WQ if qkv else R_W1
    NST = 10; NS = int(os.environ.get('NSL', 5)); SLOT = 32768; CSCHK = 30; STL = 131072 if NS == 4 else 0
    CNT = int(os.environ.get('CNT', 1)); LAG = int(os.environ.get('LAG', 1)); AH = NS - 1 - LAG
    NG = (NS + 1) // 2; XD = int(os.environ.get('XD', 4))
    PFT = int(os.environ.get('PFT', 15))
    PFA = int(os.environ.get('PFA', 1)); PFB = int(os.environ.get('PFB', 8))
    end = name + "_end"; fin = name + "_fin"
    idle = name + "_aux" if qkv else end
    if qkv: k.auxlabs = (idle, end); x_srd(k)
    RX = R_X if qkv else 8
    k(f"""s_cmp_ge_u32 s2, {nwg}
    s_cbranch_scc1 {idle}
    v_and_b32 v1, 63, v0
    s_and_b32 s24, s2, 7
    s_lshr_b32 s25, s2, 3
    s_mov_b32 s28, s3
    s_lshr_b32 s26, s24, 2
    s_mul_i32 s26, s26, {per}
    s_add_u32 s26, s26, s25
    s_and_b32 s24, s24, 3
    s_lshl_b32 s24, s24, 2
    s_and_b32 s25, s26, 3
    s_add_u32 s24, s24, s25
    s_lshr_b32 s25, s26, 2
    s_mul_i32 s26, s24, 344
    s_lshr_b32 s26, s26, 8
    s_add_u32 s27, s26, 1""")
    stamp(k, 0)
    def dopoll():
        if qkv:
            l = k.newlab("nq")
            k(f"s_cmp_eq_u32 s{SL}, 0\ns_cbranch_scc1 {l}")
            poll(k, 26, 27, CX, 10, name)
            k.lab(l)
        else:
            poll(k, 26, 27, CW, 10, name)
    k(f"s_cmp_ge_u32 s28, 4\ns_cbranch_scc0 {name}_cons")
    k(f"""s_sub_u32 s28, s28, 4
    s_lshl_b32 s29, s24, 11
    s_lshl_b32 s30, s28, 16
    s_add_u32 s29, s29, s30
    v_lshlrev_b32 v3, 4, v1
    v_add_u32 v4, s29, v3
    v_add_u32 v6, {PL - 2048}, v4
    v_lshrrev_b32 v8, 4, v1
    v_and_b32 v9, 15, v1
    v_lshlrev_b32 v10, 2, v8
    v_xor_b32 v9, v9, v10""")
    k("v_mov_b32 v12, v4\nv_mov_b32 v13, v4\nv_mov_b32 v14, v6\nv_mov_b32 v15, v6")
    k(f"s_add_u32 s34, s5, {xoff}\ns_mov_b32 s39, {8*PL}")
    if qkv:
        ln_ = k.newlab("nat")
        k(f"""s_cmp_eq_u32 s5, 0
        s_cbranch_scc0 {ln_}
        s_mov_b32 s34, 0
        s_mov_b32 s39, 128
        s_lshl_b32 s29, s24, 7
        s_lshl_b32 s30, s28, 5
        s_add_u32 s29, s29, s30
        v_lshrrev_b32 v16, 3, v1
        v_and_b32 v17, 7, v1
        v_add_u32 v18, s30, v16
        v_xor_b32 v18, v18, v17
        v_lshlrev_b32 v18, 4, v18
        v_lshlrev_b32 v19, 11, v17
        v_add_u32 v20, v18, v19
        v_add_u32 v21, 65536, v20
        v_add_u32 v23, 131072, v20
        v_add_u32 v16, s29, v16
        v_mul_u32_u24 v16, 1280, v16
        v_lshlrev_b32 v17, 4, v17
        v_add_u32 v12, v16, v17
        v_add_u32 v13, {8*1280}, v12
        v_add_u32 v14, {16*1280}, v12
        v_add_u32 v15, {24*1280}, v12""")
        k.lab(ln_)
    if not qkv:
        k("s_cmp_eq_u32 s25, 13\ns_cselect_b32 s31, 7, 15\nv_and_b32 v9, s31, v9")
    k(f"""s_lshl_b32 s31, s28, 4
    v_add_u32 v8, s31, v8
    s_mov_b32 s32, {RS}
    v_mul_lo_u32 v8, v8, s32
    v_lshlrev_b32 v9, 4, v9
    v_add_u32 v8, v8, v9
    s_lshl_b32 s31, s25, 8
    v_add_u32 v8, s31, v8
    v_add_u32 v9, {4*RS - 1024}, v8
    v_add_u32 v10, {8*RS - 2048}, v8
    v_add_u32 v11, {12*RS - 3072}, v8
    s_lshl_b32 s33, s28, 12
    s_mov_b32 s35, 0""")
    ROT = int(os.environ.get('ROT', 1)) if qkv else 0
    if ROT:
        k(f"""s_and_b32 s36, s25, 1
        s_cmp_eq_u32 s5, 0
        s_cselect_b32 s36, s36, 0
        s_mul_i32 s35, s36, {64*RS}
        s_lshl_b32 s36, s36, 7
        s_add_u32 s34, s34, s36""")
    vq = VQ(k)
    def issueX(st):
        slot = st % NS
        k(f"s_add_u32 m0, s33, {slot*SLOT}\ns_nop 0")
        for q in range(4):
            k(f"buffer_load_dwordx4 v{12+q}, s[{RX}:{RX+3}], s34 offen offset:{1024*q} lds")
        k(f"s_add_u32 s34, s34, s39"); vq.add(("x", st), 4)
    def issueW(st):
        slot = st % NS
        k(f"s_add_u32 m0, s33, {slot*SLOT + 16384}\ns_nop 0")
        for q in range(4):
            k(f"buffer_load_dwordx4 v{8+q}, s[{RW}:{RW+3}], s35 offen offset:{1024*q} lds")
        k(f"s_add_u32 s35, s35, {64*RS}"); vq.add(("w", st), 4)
        if ROT: k(f"s_cmp_eq_u32 s35, {640*RS}\ns_cselect_b32 s35, 0, s35")
    for st in range(AH): issueW(st)
    if qkv:
        import copy
        l1 = k.newlab("l1x")
        k(f"s_cmp_eq_u32 s5, 0\ns_cbranch_scc0 {l1}")
        vq_save = (vq.n, dict(vq.t))
        SA = 64; XR = 128
        for j in range(16): k(f"v_mov_b32 v{SA+j}, 0")
        def ldX(st):
            for q in range(4):
                r = XR + 16*(st % XD) + 4*q
                k(f"buffer_load_dwordx4 v[{r}:{r+3}], v{12+q}, s[{RX}:{RX+3}], s34 offen")
            k("s_add_u32 s34, s34, 128"); vq.add(("x", st), 4)
            if ROT: k("s_cmp_eq_u32 s34, 1280\ns_cselect_b32 s34, 0, s34")
        def wrX(st):
            sl = st % NS
            k(vq.wait(("x", st)))
            for q in range(4):
                r = XR + 16*(st % XD) + 4*q
                k(f"ds_write_b128 v{(20, 21, 23)[sl // 2]}, v[{r}:{r+3}] offset:{(sl & 1)*SLOT + 128*q}")
            for q in range(4 if os.environ.get('NOSTAT') is None else 0):
                for d in range(4):
                    r = XR + 16*(st % XD) + 4*q + d; t = 96 + 2*(d & 1)
                    k(f"""v_lshlrev_b32 v{t}, 16, v{r}
                    v_and_b32 v{t+1}, 0xffff0000, v{r}
                    v_pk_add_f32 v[{SA+2*q}:{SA+2*q+1}], v[{SA+2*q}:{SA+2*q+1}], v[{t}:{t+1}]
                    v_pk_fma_f32 v[{SA+8+2*q}:{SA+9+2*q}], v[{t}:{t+1}], v[{t}:{t+1}], v[{SA+8+2*q}:{SA+9+2*q}]""")
            k("s_waitcnt lgkmcnt(0)")
        for st in range(XD): ldX(st)
        wrX(0)
        for st in range(NST):
            k(vq.wait(("w", st)) + "\ns_barrier")
            if st + AH < NST: issueW(st + AH)
            if st + 1 < NST:
                if st + XD < NST: ldX(st + XD)
                wrX(st + 1)
        for j in range(4):
            k(f"v_add_f32 v{80+2*j}, v{SA+2*j}, v{SA+2*j+1}\nv_add_f32 v{81+2*j}, v{SA+8+2*j}, v{SA+9+2*j}")
        for b in range(3):
            k(f"v_xor_b32 v22, {1 << b}, v1\nv_lshlrev_b32 v22, 2, v22")
            for j in range(8): k(f"ds_bpermute_b32 v{88+j}, v22, v{80+j}")
            k("s_waitcnt lgkmcnt(0)")
            for j in range(8): k(f"v_add_f32 v{80+j}, v{80+j}, v{88+j}")
        for j in range(8): k(f"v_mul_f32 v{80+j}, 0.5, v{80+j}")
        k(f"""v_lshrrev_b32 v22, 3, v1
        s_lshl_b32 s29, s28, 5
        v_add_u32 v22, s29, v22
        v_lshlrev_b32 v22, 3, v22
        v_add_u32 v22, {STL}, v22""")
        for j in range(4): k(f"ds_write_b64 v22, v[{80+2*j}:{81+2*j}] offset:{64*j}")
        k("s_waitcnt lgkmcnt(0)\ns_barrier")
        if PFT & 1: pf_lin(k, R_WO, 8, 25)
        k(f"s_branch {fin}2")
        k.lab(l1)
        vq.n, vq.t = vq_save
    dopoll()
    for st in range(AH): issueX(st)
    for st in range(NST):
        k(vq.wait(("x", st), ("w", st)) + "\ns_barrier")
        if st + AH < NST: issueX(st + AH); issueW(st + AH)
    def pftail():
        if not (PFT & (1 if qkv else 4)): return
        if qkv: pf_lin(k, R_WO, 8, 25)
        else: pf_lin(k, R_W2, 20, 27)
    pftail()
    k(f"s_branch {fin}2")
    k.lab(name + "_cons")
    ACC = 64; FR = 128; CS = 160; B1 = 192; ST = 208
    k(f"""s_and_b32 s29, s28, 1
    s_lshr_b32 s30, s28, 1
    v_lshrrev_b32 v3, 5, v1
    v_and_b32 v4, 31, v1
    s_lshl_b32 s31, s24, 7
    s_lshl_b32 s32, s29, 6
    s_add_u32 s31, s31, s32
    v_add_u32 v5, s31, v4
    v_lshlrev_b32 v6, 3, v5
    v_mul_u32_u24 v7, {5*16384}, v3
    v_add_u32 v6, v6, v7""")
    k(f"""s_lshl_b32 s33, s25, 7
    s_lshl_b32 s34, s30, 6
    s_add_u32 s33, s33, s34
    v_lshlrev_b32 v7, 2, v3
    v_add_u32 v7, s33, v7
    v_lshlrev_b32 v8, 2, v7
    v_lshlrev_b32 v9, 1, v7
    s_mov_b32 s34, {csoff}""")
    def cs_loads():
        for ft in range(2):
            for i in range(4):
                r = CS + 16*ft + 4*i
                k(f"buffer_load_dwordx4 v[{r}:{r+3}], v8, s[8:11], s34 offen offset:{(32*ft+8*i)*4}")
    if not qkv: cs_loads()
    if not qkv:
        for ft in range(2):
            for i in range(4):
                r = B1 + 8*ft + 2*i
                k(f"buffer_load_dwordx2 v[{r}:{r+1}], v9, s[{R_B1}:{R_B1+3}], 0 offen offset:{(32*ft+8*i)*2}")
    k(f"""v_lshlrev_b32 v10, 11, v3
    s_lshl_b32 s34, s29, 6
    v_add_u32 v11, s34, v4
    v_lshlrev_b32 v11, 4, v11
    v_add_u32 v10, v10, v11
    v_lshrrev_b32 v16, 2, v1
    v_and_b32 v16, 3, v16
    v_lshlrev_b32 v17, 3, v3
    v_add_u32 v17, v17, v16
    v_lshlrev_b32 v17, 8, v17
    s_lshl_b32 s34, s30, 3
    v_lshlrev_b32 v18, 2, v16
    v_xor_b32 v18, s34, v18
    v_lshrrev_b32 v19, 4, v1
    v_and_b32 v19, 1, v19
    v_lshlrev_b32 v19, 1, v19
    v_add_u32 v18, v18, v19
    v_lshrrev_b32 v19, 1, v1
    v_and_b32 v19, 1, v19
    v_add_u32 v18, v18, v19
    v_lshlrev_b32 v18, 4, v18
    v_and_b32 v19, 1, v1
    v_lshlrev_b32 v19, 3, v19
    v_add_u32 v18, v18, v19
    v_add_u32 v11, v17, v18
    v_add_u32 v11, 16384, v11
    v_xor_b32 v12, 64, v11
    v_add_u32 v13, 65536, v10
    v_add_u32 v14, 65536, v11
    v_add_u32 v15, 65536, v12
    v_add_u32 v56, 131072, v10
    v_add_u32 v57, 131072, v11
    v_add_u32 v62, 131072, v12""")
    if qkv:
        lp_ = k.newlab("xp"); lq_ = k.newlab("xq")
        k(f"s_cmp_eq_u32 s5, 0\ns_cbranch_scc1 {lp_}")
        for hi in range(NG):
            for ks in range(4):
                for tt in range(2):
                    k(f"v_add_u32 v{32+8*hi+2*ks+tt}, {hi*65536 + ks*4096 + tt*512}, v10")
        k(f"s_branch {lq_}")
        k.lab(lp_)
        k("""s_lshl_b32 s38, s29, 6
        v_add_u32 v16, s38, v4""")
        for ks in range(4):
            k(f"""v_add_u32 v18, {2*ks}, v3
            v_xor_b32 v17, v16, v18
            v_lshlrev_b32 v17, 4, v17
            v_lshlrev_b32 v18, 11, v18
            v_add_u32 v18, v18, v17""")
            for hi in range(NG):
                for tt in range(2):
                    k(f"v_add_u32 v{32+8*hi+2*ks+tt}, {hi*65536 + tt*512}, v18")
        k.lab(lq_)
    def reads(gi):
        st, ks = divmod(gi, 4); slot = st % NS
        hi = slot // 2; base = (slot & 1) * SLOT + ks * 4096
        f = FR + 16 * (gi & 1)
        aX = (10, 13, 56)[hi]; aW = ((11, 12), (14, 15), (57, 62))[hi]
        L = []
        for ft in range(2):
            L.append(f"ds_read_b64_tr_b16 v[{f+4*ft}:{f+4*ft+1}], v{aW[ft]} offset:{base}")
            L.append(f"ds_read_b64_tr_b16 v[{f+4*ft+2}:{f+4*ft+3}], v{aW[ft]} offset:{base+1024}")
        for tt in range(2):
            if qkv: L.append(f"ds_read_b128 v[{f+8+4*tt}:{f+8+4*tt+3}], v{32+8*hi+2*ks+tt} offset:{(slot & 1)*SLOT}")
            else: L.append(f"ds_read_b128 v[{f+8+4*tt}:{f+8+4*tt+3}], v{aX} offset:{base+512*tt}")
        return [L[0], L[1], L[4], L[2], L[3], L[5]]
    def prefetch(lst_):
        k("s_lshl_b32 s38, s2, 12\nv_and_b32 v63, 255, v0\nv_lshlrev_b32 v63, 4, v63\nv_add_u32 v63, s38, v63")
        for srd, size in lst_:
            n = (size + 983039) // 983040
            for i in range(n):
                k(f"s_mov_b32 s38, {i*983040}\nbuffer_load_dwordx4 v[240:243], v63, s[{srd}:{srd+3}], s38 offen")
    if qkv and PFA:
        lp0 = k.newlab("pfa")
        k(f"s_cmp_eq_u32 s5, 0\ns_cbranch_scc0 {lp0}")
        prefetch([(R_WQ, 640*3840), (R_X, 2048*1280)])
        k.lab(lp0)
    dopoll()
    stamp(k, 1)
    lst = k.newlab("st")
    if qkv: k(f"s_cmp_eq_u32 s5, 0\ns_cbranch_scc1 {lst}")
    for pp in range(5):
        k(f"s_add_u32 s38, s5, {soff + pp*16384}")
        for tt in range(2):
            r = ST + 4*pp + 2*tt
            k(f"buffer_load_dwordx2 v[{r}:{r+1}], v6, s[8:11], s38 offen offset:{256*tt}")
    k.lab(lst)
    k("s_barrier")
    stamp(k, 2)
    for l in reads(0): k(l)
    for gi in range(NST * 4):
        st, ks = divmod(gi, 4)
        f = FR + 16 * (gi & 1)
        if not CNT or (ks == 3 and not LAG): k("s_waitcnt lgkmcnt(0)")
        if ks == 3 and st + 1 < NST: k("s_barrier")
        if gi in (3, 19): stamp(k, 3 if gi == 3 else 4)
        if qkv and gi in (7, 11, 27): stamp(k, {7: 13, 11: 9, 27: 10}[gi])
        R = reads(gi + 1) if gi + 1 < NST * 4 else []
        ri = 0
        for mi, (ft, tt) in enumerate([(0, 0), (1, 0), (0, 1), (1, 1)] if CNT else [(0, 0), (0, 1), (1, 0), (1, 1)]):
            if CNT and mi < 3:
                k(f"s_waitcnt lgkmcnt({(3, 1, 0)[mi] + (ri if R else 0)})")
            a = ACC + 32 * ft + 16 * tt
            c = "0" if gi == 0 else f"v[{a}:{a+15}]"
            k(f"v_mfma_f32_32x32x16_bf16 v[{a}:{a+15}], v[{f+4*ft}:{f+4*ft+3}], v[{f+8+4*tt}:{f+8+4*tt+3}], {c}")
            for _ in range(2):
                if ri < len(R): k(R[ri]); ri += 1
        if qkv and gi == PFB:
            lp1 = k.newlab("pfb")
            k(f"s_cmp_eq_u32 s5, 0\ns_cbranch_scc0 {lp1}")
            prefetch([(R_WO, 640*1280), (R_W1, 640*3456), (R_W2, 1728*1280)])
            k.lab(lp1)
        if qkv and gi == CSCHK:
            lc_ = k.newlab("ck")
            k(f"s_cmp_eq_u32 s5, 0\ns_cbranch_scc0 {lc_}")
            stamp(k, 11)
            dbg_wait(k, 1, name)
            stamp(k, 12)
            k.lab(lc_)
            k(f"s_mov_b32 s34, {csoff}")
            cs_loads()
    if not qkv:
        k(f"s_cmp_eq_u32 s25, 13\ns_cselect_b32 s34, s30, 0\ns_cmp_eq_u32 s34, 1\ns_cbranch_scc1 {fin}")
    stamp(k, 5)
    k("s_waitcnt vmcnt(0)")
    stamp(k, 6)
    for pp in range(1, 5):
        k(f"v_pk_add_f32 v[{ST}:{ST+1}], v[{ST}:{ST+1}], v[{ST+4*pp}:{ST+4*pp+1}]\nv_pk_add_f32 v[{ST+2}:{ST+3}], v[{ST+2}:{ST+3}], v[{ST+4*pp+2}:{ST+4*pp+3}]")
    if qkv:
        ls_ = k.newlab("lz")
        k(f"""s_cmp_eq_u32 s5, 0
        s_cbranch_scc0 {ls_}
        s_lshl_b32 s38, s29, 6
        v_add_u32 v20, s38, v4
        v_lshlrev_b32 v20, 3, v20
        v_add_u32 v20, {STL}, v20
        s_barrier
        ds_read_b64 v[{ST}:{ST+1}], v20
        ds_read_b64 v[{ST+2}:{ST+3}], v20 offset:256
        s_waitcnt lgkmcnt(0)""")
        k.lab(ls_)
    for j in range(4): swap_add(k, ST + j, 20)
    sc = 20 ** -0.5 * math.log2(math.e)
    if qkv:
        k(f"s_cmp_lt_u32 s25, 5\ns_cselect_b32 s34, {f2h(sc)}, 1.0")
    k(f"s_mov_b32 s35, {f2h(1/640)}\ns_mov_b32 s36, {f2h(1e-5)}")
    for tt in range(2):
        m = 22 + 4*tt; r = 24 + 4*tt
        k(f"""v_mul_f32 v{m}, s35, v{ST+2*tt}
        v_mul_f32 v20, s35, v{ST+2*tt+1}
        v_fma_f32 v20, -v{m}, v{m}, v20
        v_add_f32 v20, s36, v20
        v_rsq_f32 v{r}, v20
        s_nop 0""")
        if qkv: k(f"v_mul_f32 v{r}, s34, v{r}")
    if not qkv:
        for ft in range(2):
            for i in range(4):
                r = B1 + 8*ft + 2*i; d = 224 + 16*ft + 4*i
                k(f"v_lshlrev_b32 v{d}, 16, v{r}\nv_and_b32 v{d+1}, 0xffff0000, v{r}\nv_lshlrev_b32 v{d+2}, 16, v{r+1}\nv_and_b32 v{d+3}, 0xffff0000, v{r+1}")
    k(f"""v_lshlrev_b32 v30, 15, v3
    v_lshlrev_b32 v31, 4, v5
    v_add_u32 v30, v30, v31
    s_lshr_b32 s37, s33, 3
    s_lshl_b32 s37, s37, 15
    s_add_u32 s37, s37, s5
    s_add_u32 s37, s37, {outoff}""")
    T = 32
    n = 0
    for ft in range(2):
        for i2 in range(2):
            for tt in range(2):
                a = ACC + 32*ft + 16*tt + 8*i2; cs = CS + 16*ft + 8*i2; m = 22 + 4*tt; r = 24 + 4*tt
                t = T + 4 * (n % 4); n += 1
                for p in range(4):
                    x = a + 2*p
                    k(f"v_pk_fma_f32 v[{x}:{x+1}], v[{m}:{m+1}], v[{cs+2*p}:{cs+2*p+1}], v[{x}:{x+1}] op_sel_hi:[0,1,1] neg_lo:[1,0,0] neg_hi:[1,0,0]")
                for p in range(4):
                    x = a + 2*p
                    if qkv:
                        k(f"v_pk_mul_f32 v[{x}:{x+1}], v[{r}:{r+1}], v[{x}:{x+1}] op_sel_hi:[0,1]")
                    else:
                        b = 224 + 16*ft + 8*i2 + 2*p
                        k(f"v_pk_fma_f32 v[{x}:{x+1}], v[{r}:{r+1}], v[{x}:{x+1}], v[{b}:{b+1}] op_sel_hi:[0,1,1]")
                if not qkv:
                    for p in range(8): k(f"v_max_f32 v{a+p}, 0, v{a+p}")
                    for p in range(4):
                        x = a + 2*p
                        k(f"v_pk_mul_f32 v[{x}:{x+1}], v[{x}:{x+1}], v[{x}:{x+1}]")
                for p in range(4):
                    k(f"v_cvt_pk_bf16_f32 v{t+p}, v{a+2*p}, v{a+2*p+1}")
                k(f"s_nop 1\nv_permlane32_swap_b32 v{t}, v{t+2}\nv_permlane32_swap_b32 v{t+1}, v{t+3}")
                k(f"s_nop 0\nbuffer_store_dwordx4 v[{t}:{t+3}], v30, s[8:11], s37 offen offset:{512*tt}{SC1}")
            k(f"s_add_u32 s37, s37, {2*PL}")
    stamp(k, 7)
    k.lab(fin)
    arrive(k, 24, CQ if qkv else CH, nowait=fin + '2')
    stamp(k, 8)
    stamp_flush(k, slot, 3)
    k.lab(end)

import struct
def f2h(x):
    return "0x%08x" % struct.unpack("<I", struct.pack("<f", x))[0]
```

```python
import os
from g0 import *
def emit_rg(k, kind, slot=2):
    wo = kind == 'wo'
    name = k.newlab(kind)
    NST = 10 if wo else 27
    NS = int(os.environ.get('NSR', 8)); SLOT = 20480; RS = 1280
    xoff = WS_O if wo else WS_H
    resoff = WS_XIN if wo else WS_X1
    outoff = WS_X1 if wo else WS_XIN + LSTR
    soff = WS_S1 if wo else WS_SIN + LSTR
    RW = R_WO if wo else R_W2
    end = name + "_end"; fin = name + "_fin"
    k(f"""s_and_b32 s24, s2, 7
    s_lshr_b32 s25, s2, 3
    s_cmp_ge_u32 s25, 28
    s_cbranch_scc1 {end}
    v_and_b32 v1, 63, v0
    s_mov_b32 s28, s3
    s_mul_i32 s26, s24, 28
    s_add_u32 s26, s26, s25
    s_cmp_ge_u32 s26, 220
    s_cbranch_scc1 {end}
    s_mul_i32 s24, s26, 6554
    s_lshr_b32 s24, s24, 16
    s_mul_i32 s25, s24, 10
    s_sub_u32 s25, s26, s25
    s_mul_i32 s42, s24, 3
    s_add_u32 s43, s42, 2
    s_lshr_b32 s42, s42, 2
    s_lshr_b32 s43, s43, 2
    s_min_u32 s43, s43, 15""")
    stamp(k, 0)
    def dopoll(): poll(k, 42, 43, CA if wo else CH, 16 if wo else 14, name)
    k(f"s_cmp_ge_u32 s28, 4\ns_cbranch_scc0 {name}_cons")
    k(f"""s_sub_u32 s28, s28, 4
    s_mul_i32 s29, s28, 192
    s_mul_i32 s30, s24, 96
    s_mov_b32 s31, 683
    s_mov_b32 s32, 96
    s_cmp_eq_u32 s24, 21
    s_cselect_b32 s38, 31, 127""")
    for q in range(3):
        k(f"""v_add_u32 v3, s29, v1
        v_add_u32 v3, {64*q}, v3
        v_mul_lo_u32 v4, v3, s31
        v_lshrrev_b32 v4, 16, v4
        v_mul_lo_u32 v5, v4, s32
        v_sub_u32 v5, v3, v5
        v_and_b32 v5, s38, v5
        v_add_u32 v5, s30, v5
        v_lshlrev_b32 v5, 4, v5
        v_lshlrev_b32 v4, 15, v4
        v_add_u32 v5, v5, v4
        v_subrev_u32 v{8+q}, {1024*q}, v5""")
    k(f"""v_lshrrev_b32 v3, 3, v1
    s_lshl_b32 s31, s28, 4
    v_add_u32 v3, s31, v3
    s_mov_b32 s32, {RS}
    v_mul_lo_u32 v3, v3, s32
    v_and_b32 v4, 7, v1
    v_lshrrev_b32 v5, 4, v1
    v_and_b32 v5, 1, v5
    v_lshlrev_b32 v5, 2, v5
    v_xor_b32 v4, v4, v5
    v_lshlrev_b32 v4, 4, v4
    v_add_u32 v3, v3, v4
    s_lshl_b32 s31, s25, 7
    v_add_u32 v11, s31, v3
    v_add_u32 v12, {8*RS - 1024}, v11
    s_mul_i32 s33, s28, 3072
    s_lshl_b32 s36, s28, 11
    s_add_u32 s36, s36, 12288
    s_add_u32 s34, s5, {xoff}
    s_mov_b32 s35, 0""")
    CNT = int(os.environ.get('CNT', 1)); LAG = int(os.environ.get('LAG', 1)); AH = NS - 1 - LAG
    vq = VQ(k)
    def issueX(st):
        sl = st % NS
        k(f"s_add_u32 m0, s33, {sl*SLOT}\ns_nop 0")
        for q in range(3):
            k(f"buffer_load_dwordx4 v{8+q}, s[8:11], s34 offen offset:{1024*q} lds")
        k(f"s_add_u32 s34, s34, {8*PL}"); vq.add(("x", st), 3)
    def issueW(st):
        sl = st % NS
        k(f"s_add_u32 m0, s36, {sl*SLOT}\ns_nop 0")
        for q in range(2):
            k(f"buffer_load_dwordx4 v{11+q}, s[{RW}:{RW+3}], s35 offen offset:{1024*q} lds")
        k(f"s_add_u32 s35, s35, {64*RS}"); vq.add(("w", st), 2)
    for st in range(AH): issueW(st)
    dopoll()
    for st in range(AH): issueX(st)
    for st in range(NST):
        k(vq.wait(("x", st), ("w", st)) + "\ns_barrier")
        if st + AH < NST: issueX(st + AH); issueW(st + AH)
    PFT = int(os.environ.get('PFT', 15))
    if wo and (PFT & 2): pf_cols(k, R_W1, 3456)
    if not wo:
        k(f"s_cmp_eq_u32 s5, 0\ns_cbranch_scc0 {fin}")
        if PFT & 8: pf_cols(k, R_WQ, 3840)
    k(f"s_branch {fin}2")
    k.lab(name + "_cons")
    if int(os.environ.get("PRIO", 0)) & 8: k("s_setprio 2")
    lc = name + "_c3"
    k(f"s_cmp_eq_u32 s28, 3\ns_cbranch_scc0 {lc}")
    for st in range(NST + 1): k("s_barrier")
    k(f"s_branch {fin}")
    k.lab(lc)
    ACC = 128; FR = 64; RES = 16; B2 = 112
    k(f"""v_lshrrev_b32 v3, 5, v1
    v_and_b32 v4, 31, v1
    s_mul_i32 s31, s24, 96
    s_lshl_b32 s32, s28, 5
    s_add_u32 s31, s31, s32
    v_add_u32 v5, s31, v4
    v_lshlrev_b32 v6, 4, v5
    v_lshlrev_b32 v7, 3, v3
    v_add_u32 v6, v6, v7
    s_lshl_b32 s33, s25, 18
    s_add_u32 s33, s33, s5
    s_add_u32 s33, s33, {resoff}""")
    k(f"s_mov_b32 s39, {PL}")
    RR = R_X if wo else 8
    if wo:
        x_srd(k)
        ln_ = k.newlab("rn")
        k(f"""s_cmp_eq_u32 s5, 0
        s_cbranch_scc0 {ln_}
        v_mul_u32_u24 v6, 1280, v5
        v_add_u32 v6, v6, v7
        s_lshl_b32 s33, s25, 7
        s_mov_b32 s39, 16""")
        k.lab(ln_)
    lr = name + "_nr"; lb = name + "_nb"
    k(f"s_cmp_ge_u32 s31, 2048\ns_cselect_b32 s37, 1, 0")
    if not wo:
        k(f"v_lshlrev_b32 v7, 3, v3\ns_lshl_b32 s34, s25, 7\nv_add_u32 v7, s34, v7")
        for ft in range(2):
            for i in range(4):
                r = B2 + 8*ft + 2*i
                k(f"buffer_load_dwordx2 v[{r}:{r+1}], v7, s[{R_B2}:{R_B2+3}], 0 offen offset:{(32*ft+8*i)*2}")
    k(f"""v_mul_u32_u24 v8, 1536, v3
    s_lshl_b32 s34, s28, 5
    v_add_u32 v9, s34, v4
    v_lshlrev_b32 v9, 4, v9
    v_add_u32 v8, v8, v9
    v_lshrrev_b32 v14, 2, v1
    v_and_b32 v14, 3, v14
    v_lshlrev_b32 v15, 3, v3
    v_add_u32 v15, v15, v14
    v_lshlrev_b32 v15, 7, v15
    v_lshrrev_b32 v14, 1, v14
    v_lshlrev_b32 v14, 2, v14
    v_lshrrev_b32 v9, 4, v1
    v_and_b32 v9, 1, v9
    v_lshlrev_b32 v9, 1, v9
    v_add_u32 v14, v14, v9
    v_lshrrev_b32 v9, 1, v1
    v_and_b32 v9, 1, v9
    v_add_u32 v14, v14, v9
    v_lshlrev_b32 v14, 4, v14
    v_and_b32 v9, 1, v1
    v_lshlrev_b32 v9, 3, v9
    v_add_u32 v14, v14, v9
    v_add_u32 v9, v15, v14
    v_add_u32 v9, 12288, v9
    v_xor_b32 v10, 64, v9
    v_add_u32 v11, {3*SLOT}, v8
    v_add_u32 v12, {3*SLOT}, v9
    v_add_u32 v13, {3*SLOT}, v10
    v_add_u32 v32, {6*SLOT}, v8
    v_add_u32 v33, {6*SLOT}, v9
    v_add_u32 v34, {6*SLOT}, v10""")
    def reads(gi):
        st, hf = divmod(gi, 2); sl = st % NS
        hi = sl // 3; base = (sl % 3) * SLOT
        f = FR + 24 * (gi & 1)
        aX = (8, 11, 32)[hi]; aW = ((9, 10), (12, 13), (33, 34))[hi]
        L = []
        for kk in range(2):
            ks = 2*hf + kk; ff = f + 12*kk
            L.append(f"ds_read_b64_tr_b16 v[{ff}:{ff+1}], v{aW[0]} offset:{base+ks*2048}")
            L.append(f"ds_read_b64_tr_b16 v[{ff+2}:{ff+3}], v{aW[0]} offset:{base+ks*2048+512}")
            L.append(f"ds_read_b128 v[{ff+8}:{ff+11}], v{aX} offset:{base+ks*3072}")
            L.append(f"ds_read_b64_tr_b16 v[{ff+4}:{ff+5}], v{aW[1]} offset:{base+ks*2048}")
            L.append(f"ds_read_b64_tr_b16 v[{ff+6}:{ff+7}], v{aW[1]} offset:{base+ks*2048+512}")
        return L
    dopoll()
    stamp(k, 1)
    k(f"s_cmp_eq_u32 s37, 1\ns_cbranch_scc1 {lr}")
    for ft in range(2):
        for i in range(4):
            r = RES + 8*ft + 2*i
            k(f"buffer_load_dwordx2 v[{r}:{r+1}], v6, s[{RR}:{RR+3}], s33 offen\ns_add_u32 s33, s33, s39")
    k.lab(lr)
    k("s_barrier")
    stamp(k, 2)
    for l in reads(0): k(l)
    for gi in range(NST * 2):
        st, hf = divmod(gi, 2)
        f = FR + 24 * (gi & 1)
        if not CNT or (hf == 1 and not LAG): k("s_waitcnt lgkmcnt(0)")
        if hf == 1 and st + 1 < NST: k("s_barrier")
        R = reads(gi + 1) if gi + 1 < NST * 2 else []
        ri = 0
        for mi, (kk, ft) in enumerate([(0, 0), (0, 1), (1, 0), (1, 1)]):
            if CNT: k(f"s_waitcnt lgkmcnt({(7, 5, 2, 0)[mi] + ri})")
            a = ACC + 16 * ft; ff = f + 12*kk
            c = "0" if (gi == 0 and kk == 0) else f"v[{a}:{a+15}]"
            k(f"v_mfma_f32_32x32x16_bf16 v[{a}:{a+15}], v[{ff+4*ft}:{ff+4*ft+3}], v[{ff+8}:{ff+11}], {c}")
            for _ in range(3):
                if ri < len(R): k(R[ri]); ri += 1
    stamp(k, 5)
    k(f"s_cmp_eq_u32 s37, 1\ns_cbranch_scc1 {fin}")
    k("s_waitcnt vmcnt(0)\ns_nop 7\ns_nop 3")
    stamp(k, 6)
    T = 64
    for ft in range(2):
        for i in range(4):
            r = RES + 8*ft + 2*i; a = ACC + 16*ft + 4*i; t = T + 4*(i & 1)
            k(f"""v_lshlrev_b32 v{t}, 16, v{r}
            v_and_b32 v{t+1}, 0xffff0000, v{r}
            v_lshlrev_b32 v{t+2}, 16, v{r+1}
            v_and_b32 v{t+3}, 0xffff0000, v{r+1}
            v_pk_add_f32 v[{a}:{a+1}], v[{a}:{a+1}], v[{t}:{t+1}]
            v_pk_add_f32 v[{a+2}:{a+3}], v[{a+2}:{a+3}], v[{t+2}:{t+3}]""")
            if not wo:
                b = B2 + 8*ft + 2*i; t = T + 8 + 4*(i & 1)
                k(f"""v_lshlrev_b32 v{t}, 16, v{b}
                v_and_b32 v{t+1}, 0xffff0000, v{b}
                v_lshlrev_b32 v{t+2}, 16, v{b+1}
                v_and_b32 v{t+3}, 0xffff0000, v{b+1}
                v_pk_add_f32 v[{a}:{a+1}], v[{a}:{a+1}], v[{t}:{t+1}]
                v_pk_add_f32 v[{a+2}:{a+3}], v[{a+2}:{a+3}], v[{t+2}:{t+3}]""")
    cv = []
    n = 0
    for ft in range(2):
        for i2 in range(2):
            a = ACC + 16*ft + 8*i2; t = T + 16 + 4*n; n += 1
            for p in range(4):
                k(f"v_cvt_pk_bf16_f32 v{t+p}, v{a+2*p}, v{a+2*p+1}")
            k(f"s_nop 1\nv_permlane32_swap_b32 v{t}, v{t+2}\nv_permlane32_swap_b32 v{t+1}, v{t+3}")
            cv.append((ft, i2, t))
    if not wo:
        lf = name + "_nf"
        k(f"""s_cmp_eq_u32 s5, 0
        s_cbranch_scc1 {lf}
        s_mov_b32 s34, 1280
        v_mul_lo_u32 v14, v5, s34
        v_lshlrev_b32 v15, 4, v3
        v_add_u32 v14, v14, v15
        s_lshl_b32 s34, s25, 7""")
        for ft, i2, t in cv:
            k(f"buffer_store_dwordx4 v[{t}:{t+3}], v14, s[{R_OUT}:{R_OUT+3}], s34 offen offset:{(32*ft+16*i2)*2}")
        stamp(k, 7); stamp_flush(k, slot, 3)
        k("s_endpgm")
        k.lab(lf)
    k(f"""v_lshlrev_b32 v14, 15, v3
    v_lshlrev_b32 v15, 4, v5
    v_add_u32 v14, v14, v15
    s_lshl_b32 s34, s25, 18
    s_add_u32 s34, s34, s5
    s_add_u32 s34, s34, {outoff}""")
    for ft, i2, t in cv:
        k(f"buffer_store_dwordx4 v[{t}:{t+3}], v14, s[8:11], s34 offen{SC1}\ns_add_u32 s34, s34, {2*PL}")
    k(f"v_pk_add_f32 v[100:101], v[{ACC}:{ACC+1}], v[{ACC+2}:{ACC+3}]\nv_pk_mul_f32 v[102:103], v[{ACC}:{ACC+1}], v[{ACC}:{ACC+1}]\nv_pk_fma_f32 v[102:103], v[{ACC+2}:{ACC+3}], v[{ACC+2}:{ACC+3}], v[102:103]")
    for p in range(2, 16):
        x = ACC + 2*p
        k(f"v_pk_add_f32 v[100:101], v[100:101], v[{x}:{x+1}]\nv_pk_fma_f32 v[102:103], v[{x}:{x+1}], v[{x}:{x+1}], v[102:103]")
    k("v_add_f32 v100, v100, v101\nv_add_f32 v101, v102, v103")
    swap_add(k, 100, 104); swap_add(k, 101, 104)
    k(f"""v_lshlrev_b32 v15, 3, v4
    s_lshl_b32 s35, s31, 3
    s_lshl_b32 s36, s25, 14
    s_add_u32 s35, s35, s36
    s_add_u32 s35, s35, s5
    s_add_u32 s35, s35, {soff}
    v_cmp_gt_u32 vcc, 32, v1
    s_and_saveexec_b64 s[40:41], vcc
    buffer_store_dwordx2 v[100:101], v15, s[8:11], s35 offen{SC1}
    s_mov_b64 exec, s[40:41]""")
    stamp(k, 7)
    k.lab(fin)
    if not wo:
        le = name + "_le"
        k(f"s_cmp_eq_u32 s5, 0\ns_cbranch_scc1 {le}\ns_endpgm")
        k.lab(le)
    arrive(k, 24, CW if wo else CX, nextlayer=not wo, nowait=fin + '2')
    stamp(k, 8)
    stamp_flush(k, slot, 3)
    k.lab(end)
```

```python
from g0 import *
class LQ:
    def __init__(s, k): s.k = k; s.n = 0; s.tag = {}
    def issue(s, txt, tag):
        s.k(txt); s.n += 1; s.tag[tag] = s.n
    def need(s, *tags):
        m = max(s.tag[t] for t in tags)
        s.k(f"s_waitcnt lgkmcnt({min(15, s.n - m)})")
def emit_att(k, slot=3):
    KS = 6144; VB = 5*KS; VS = 6208
    name = k.newlab("att")
    k(f"""v_and_b32 v1, 63, v0
    s_and_b32 s24, s2, 7
    s_lshr_b32 s25, s2, 3
    s_lshl_b32 s24, s24, 1
    s_and_b32 s26, s25, 1
    s_add_u32 s24, s24, s26
    s_lshr_b32 s25, s25, 1
    s_sub_u32 s26, s25, 2
    s_max_i32 s26, s26, 0
    s_mov_b32 s27, s25""")
    stamp(k, 0)
    k("s_mov_b32 s42, s26\ns_mov_b32 s43, s27")
    k(f"""s_lshr_b32 s26, s3, 2
    s_and_b32 s28, s3, 3
    s_mul_i32 s29, s24, 5
    s_lshl_b32 s27, s29, 1
    s_mul_i32 s30, s26, 5
    s_add_u32 s27, s27, s30""")
    k(f"""s_lshl_b32 s30, s25, 7
    s_lshl_b32 s31, s3, 6
    s_add_u32 s30, s30, s31
    s_sub_u32 s30, s30, 256
    s_max_i32 s30, s30, 0
    s_lshl_b32 s30, s30, 4
    s_add_u32 s31, s29, 80
    s_lshl_b32 s31, s31, 15
    s_add_u32 s30, s30, s31
    v_lshlrev_b32 v3, 4, v1
    v_add_u32 v3, s30, v3""")
    Q0 = 8; Q1 = 12
    k(f"""v_lshrrev_b32 v4, 5, v1
    v_and_b32 v5, 31, v1
    s_lshl_b32 s33, s25, 7
    s_lshl_b32 s34, s28, 5
    s_add_u32 s33, s33, s34
    v_add_u32 v6, s33, v5
    v_lshlrev_b32 v7, 4, v6
    s_mul_i32 s34, s26, 3
    s_add_u32 s36, s34, s29
    v_add_u32 v16, s36, v4
    v_lshlrev_b32 v16, 15, v16
    v_add_u32 v16, v16, v7""")
    k(f"""v_mov_b32 v20, 0x3f803f80
    v_mov_b32 v21, 0x3f803f80
    v_mov_b32 v22, 0x3f803f80
    v_mov_b32 v23, 0x3f803f80
    v_lshlrev_b32 v17, 4, v0
    v_min_u32 v17, {6144-16}, v17
    ds_write_b128 v17, v[20:23] offset:{VB + 5*VS}""")
    k(f"""s_lshl_b32 s38, s28, 9
    v_add_u32 v18, s34, v4
    v_mul_u32_u24 v18, {KS}, v18
    v_lshlrev_b32 v19, 4, v5
    v_add_u32 v19, s38, v19
    v_add_u32 v24, v18, v19
    v_add_u32 v25, {2*KS}, v19
    v_lshrrev_b32 v18, 2, v1
    v_and_b32 v18, 3, v18
    v_lshlrev_b32 v19, 2, v4
    v_add_u32 v18, v18, v19
    v_lshlrev_b32 v18, 4, v18
    v_add_u32 v18, s38, v18
    v_lshrrev_b32 v19, 4, v1
    v_and_b32 v19, 1, v19
    v_lshlrev_b32 v19, 2, v19
    v_and_b32 v27, 3, v1
    v_add_u32 v19, v19, v27
    v_cmp_lt_u32 vcc, 4, v19
    v_cmp_eq_u32 s[44:45], 4, v19
    v_and_b32 v27, 1, v19
    v_lshlrev_b32 v27, 1, v27
    v_lshrrev_b32 v19, 1, v19
    v_and_b32 v19, 1, v19
    v_or_b32 v19, v19, v27
    s_mul_i32 s39, s26, 6
    v_add_u32 v19, s39, v19
    s_add_u32 s39, s26, 4
    v_mov_b32 v27, s39
    v_cndmask_b32 v19, v19, v27, s[44:45]
    v_and_b32 v27, 1, v19
    v_lshrrev_b32 v19, 1, v19
    v_cndmask_b32 v19, v19, 5, vcc
    v_mul_u32_u24 v19, {VS}, v19
    v_lshlrev_b32 v27, 3, v27
    v_add_u32 v18, v18, v19
    v_add_u32 v18, v18, v27
    v_add_u32 v26, {VB}, v18""")
    k("v_lshlrev_b32 v18, 2, v4\nv_sub_u32 v18, v5, v18")
    for x in range(16):
        i, j = divmod(x, 4)
        k(f"v_cmp_gt_i32 s[{48+2*x}:{49+2*x}], {8*i+j}, v18")
    k("v_mov_b32 v19, 0xffff\nv_mov_b32 v27, 0xffff0000")
    for p in range(8):
        k(f"v_cndmask_b32 v36, 0, v19, s[{48+4*p}:{49+4*p}]\nv_cndmask_b32 v37, 0, v27, s[{50+4*p}:{51+4*p}]\nv_or_b32 v{28+p}, v36, v37")
    ldw = k.newlab("adw")
    k(f"s_cmp_eq_u32 s5, 0\ns_cbranch_scc0 {ldw}\ns_cmp_eq_u32 s3, 0\ns_cbranch_scc0 {ldw}")
    dbg_wait(k, 2, name)
    k.lab(ldw)
    poll(k, 42, 43, CQ, 15, name)
    stamp(k, 1)
    ld = k.newlab("ld")
    k(f"""s_add_u32 s36, s29, 2
    s_lshl_b32 s36, s36, 15
    s_add_u32 s37, s5, {WS_QKV}
    s_add_u32 s36, s36, s37
    s_cmp_ge_u32 s3, 6
    s_cbranch_scc1 {ld}
    s_lshl_b32 s31, s3, 10
    s_add_u32 s32, s5, {WS_QKV}""")
    for p in range(5):
        k(f"s_add_u32 m0, s31, {p*KS}\ns_nop 0\nbuffer_load_dwordx4 v3, s[8:11], s32 offen lds\ns_add_u32 s32, s32, {PL}")
    ASP = int(os.environ.get('ASP', 1))
    def ldV():
        k(f"s_add_u32 s32, s32, {75*PL}")
        for p in range(5):
            k(f"s_add_u32 m0, s31, {VB + p*VS}\ns_nop 0\nbuffer_load_dwordx4 v3, s[8:11], s32 offen lds\ns_add_u32 s32, s32, {PL}")
    if not ASP: ldV()
    k.lab(ld)
    k(f"""buffer_load_dwordx4 v[{Q0}:{Q0+3}], v16, s[8:11], s37 offen
    buffer_load_dwordx4 v[{Q1}:{Q1+3}], v7, s[8:11], s36 offen""")
    if ASP:
        l2 = k.newlab("lv"); l3 = k.newlab("lw")
        k(f"s_cmp_ge_u32 s3, 6\ns_cbranch_scc1 {l2}")
        ldV()
        k(f"s_waitcnt vmcnt(5)\ns_branch {l3}")
        k.lab(l2)
        k("s_waitcnt vmcnt(0)")
        k.lab(l3)
    k(f"s_lshl_b32 s40, s25, 2\ns_add_u32 s40, s40, s28\ns_sub_u32 s40, 8, s40\ns_max_i32 s40, s40, 0")
    k("s_waitcnt lgkmcnt(0)" if ASP else "s_waitcnt vmcnt(0) lgkmcnt(0)")
    k(f"""v_cmp_eq_u32 vcc, 0, v4
    s_cmp_eq_u32 s26, 1
    s_cselect_b64 s[42:43], 0, vcc
    s_cselect_b64 s[44:45], vcc, 0
    v_cndmask_b32 v{Q1}, 0, v{Q1}, s[42:43]
    v_cndmask_b32 v{Q1+1}, 0, v{Q1+1}, s[42:43]
    v_cndmask_b32 v{Q1+2}, 0, v{Q1+2}, s[44:45]
    v_cndmask_b32 v{Q1+3}, 0, v{Q1+3}, s[44:45]
    s_barrier""")
    stamp(k, 2)
    SB = [64, 80, 96]; KF = [112, 120, 128]; VF = [136, 144, 152]; NM = 160; O = 176; PP = 40; PF = 48; M0 = 38; M1 = 39
    q = LQ(k)
    kslot = {}; nk = [0]
    def rdK(j, ps):
        sl = nk[0] % 3; nk[0] += 1; kslot[(j, ps)] = sl; f = KF[sl]
        q.issue(f"ds_read_b128 v[{f}:{f+3}], v24 offset:{512*j}", ("k", j, ps, 0))
        q.issue(f"ds_read_b128 v[{f+4}:{f+7}], v25 offset:{512*j}", ("k", j, ps, 1))
    def mmS(j, ps, buf):
        f = KF[kslot[(j, ps)]]; d = SB[buf]
        q.need(("k", j, ps, 0), ("k", j, ps, 1))
        c = "0" if ps == 1 else f"v[{NM}:{NM+15}]"
        k(f"v_mfma_f32_32x32x16_bf16 v[{d}:{d+15}], v[{f}:{f+3}], v[{Q0}:{Q0+3}], {c}")
        k(f"v_mfma_f32_32x32x16_bf16 v[{d}:{d+15}], v[{f+4}:{f+7}], v[{Q1}:{Q1+3}], v[{d}:{d+15}]")
    tails = []
    def skipper(j):
        ls = k.newlab("sk"); ln = k.newlab("nx")
        k(f"s_cmp_gt_u32 s40, {j}\ns_cbranch_scc1 {ls}")
        tails.append((ls, ln)); return ln
    def merge():
        l = k.newlab("mg")
        k(f"s_cmp_eq_u32 s40, 0\ns_cbranch_scc1 {l}")
        for x in range(16): k(f"v_mov_b32 v{SB[0]+x}, 0xff61b1e6")
        k.lab(l)
        for x in range(16):
            k(f"v_cndmask_b32 v{SB[0]+x}, v{SB[1]+x}, v{SB[0]+x}, s[{48+2*x}:{49+2*x}]")
    rdK(0, 1); rdK(8, 1); rdK(1, 1)
    mmS(0, 1, 0); mmS(8, 1, 1); rdK(2, 1); mmS(1, 1, 2)
    k("s_nop 7\ns_nop 3")
    merge()
    d = SB[0]
    k(f"v_max3_f32 v{M0}, v{d}, v{d+1}, v{d+2}\nv_max3_f32 v{M1}, v{d+3}, v{d+4}, v{d+5}")
    for p in range(3, 8):
        k(f"v_max3_f32 v{M0 + (p & 1)}, v{M0 + (p & 1)}, v{d+2*p}, v{d+2*p+1}")
    cur = 2
    for j in range(1, 8):
        nxt = 0 if cur != 0 else 1
        if j + 2 <= 7: rdK(j + 2, 1)
        if j + 1 <= 7: mmS(j + 1, 1, nxt)
        else:
            rdK(0, 2); rdK(8, 2); k("s_nop 7")
        ln = skipper(j)
        d = SB[cur]
        for p in range(8):
            k(f"v_max3_f32 v{M0 + (p & 1)}, v{M0 + (p & 1)}, v{d+2*p}, v{d+2*p+1}")
        k.lab(ln)
        cur = nxt
    k(f"""v_max_f32 v{M0}, v{M0}, v{M1}
    v_mov_b32 v{M1}, v{M0}
    s_nop 1
    v_permlane32_swap_b32 v{M0}, v{M1}
    s_nop 1
    v_max_f32 v{M0}, v{M0}, v{M1}""")
    for x in range(16): k(f"v_sub_f32 v{NM+x}, 0, v{M0}")
    if ASP: k("s_waitcnt vmcnt(0)\ns_barrier")
    stamp(k, 3)
    vslot = {}; nv = [0]
    def rdV(j):
        sl = nv[0] % 3; nv[0] += 1; vslot[j] = sl; f = VF[sl]
        for u in range(2):
            for e in range(2):
                q.issue(f"ds_read_b64_tr_b16 v[{f+4*u+2*e}:{f+4*u+2*e+1}], v26 offset:{512*j+256*u+128*e}", ("v", j, u, e))
    first = [True]
    def pv(j, P):
        f = VF[vslot[j]]
        q.need(*[("v", j, u, e) for u in range(2) for e in range(2)])
        for u in range(2):
            c = "0" if first[0] else f"v[{O}:{O+15}]"
            first[0] = False
            k(f"v_mfma_f32_32x32x16_bf16 v[{O}:{O+15}], v[{f+4*u}:{f+4*u+3}], v[{P+4*u}:{P+4*u+3}], {c}")
    def expcvt(buf):
        d = SB[buf]
        for x in range(16): k(f"v_exp_f32 v{d+x}, v{d+x}")
        for p in range(8): k(f"v_cvt_pk_bf16_f32 v{PP+p}, v{d+2*p}, v{d+2*p+1}")
    rdK(1, 2); rdV(0); rdV(8)
    k("s_nop 1")
    mmS(0, 2, 0); mmS(8, 2, 1); mmS(1, 2, 2); rdK(2, 2); rdV(1)
    k("s_nop 7\ns_nop 3")
    merge()
    expcvt(0)
    for p in range(8):
        k(f"v_and_b32 v{PF+p}, v{PP+p}, v{28+p}")
    for p in range(8):
        k(f"v_xor_b32 v{PP+p}, v{PP+p}, v{PF+p}")
    k("s_nop 1")
    pv(0, PF); pv(8, PP)
    cur = 2
    for j in range(1, 8):
        nxt = 0 if cur != 0 else 1
        if j + 1 <= 7:
            mmS(j + 1, 2, nxt)
            rdV(j + 1)
        if j + 2 <= 7: rdK(j + 2, 2)
        ln = skipper(j)
        expcvt(cur)
        k("s_nop 1")
        pv(j, PP)
        k.lab(ln)
        cur = nxt
    stamp(k, 4)
    XB = 0x18000
    lo = k.newlab("ao"); le = k.newlab("ae")
    k(f"""s_nop 7
    s_nop 7
    v_rcp_f32 v{M0}, v{O+12}
    s_mul_i32 s34, s26, 3
    s_add_u32 s34, s34, s29
    v_add_u32 v18, s34, v4
    v_lshlrev_b32 v18, 15, v18
    v_add_u32 v18, v18, v7
    s_add_u32 s36, s5, {WS_O}
    s_add_u32 s37, s29, 2
    s_lshl_b32 s37, s37, 15
    s_add_u32 s37, s37, s36
    s_lshl_b32 s38, s28, 9
    v_lshlrev_b32 v19, 3, v1
    v_add_u32 v19, s38, v19
    v_add_u32 v19, {XB}, v19""")
    for x in range(12): k(f"v_mul_f32 v{O+x}, v{O+x}, v{M0}")
    for p in range(6): k(f"v_cvt_pk_bf16_f32 v{PP+p}, v{O+2*p}, v{O+2*p+1}")
    k(f"""buffer_store_dwordx4 v[{PP}:{PP+3}], v18, s[8:11], s36 offen{SC1}
    s_cmp_eq_u32 s26, 1
    s_cbranch_scc0 {le}
    ds_write_b64 v19, v[{PP+4}:{PP+5}] offset:0
    s_waitcnt lgkmcnt(0)
    s_barrier
    s_branch {lo}""".replace("v19, v[", f"v19, v["))
    k.lab(le)
    k(f"""s_barrier
    ds_read_b64 v[{PP+6}:{PP+7}], v19
    v_cmp_gt_u32 vcc, 32, v1
    s_and_saveexec_b64 s[42:43], vcc
    s_waitcnt lgkmcnt(0)
    buffer_store_dwordx4 v[{PP+4}:{PP+7}], v7, s[8:11], s37 offen{SC1}
    s_mov_b64 exec, s[42:43]""")
    k.lab(lo)
    stamp(k, 7)
    arrive(k, 25, CA)
    stamp(k, 8)
    stamp_flush(k, slot, 3)
    k.tails = getattr(k, "tails", []) + tails
```

```python
from g0 import *
import math
def emit_lng(k, kind, slot=1):
    qkv = kind == 'qkv'
    name = k.newlab(kind)
    RS = 3840 if qkv else 3456
    per = 30 if qkv else 28
    nwg = per * 8
    xoff = WS_XIN if qkv else WS_X1
    soff = WS_SIN if qkv else WS_S1
    outoff = WS_QKV if qkv else WS_H
    csoff = WS_CS if qkv else WS_CS + 8192
    RW = R_WQ if qkv else R_W1
    NST = 10; NS = int(os.environ.get('NSL', 5)); SLOT = 32768; CSCHK = 30; STL = 131072 if NS == 4 else 0
    CNT = int(os.environ.get('CNT', 1)); LAG = int(os.environ.get('LAG', 1)); AH = NS - 1 - LAG
    NG = (NS + 1) // 2; XD = int(os.environ.get('XD', 4))
    PFT = int(os.environ.get('PFT', 15))
    PFA = int(os.environ.get('PFA', 1)); PFB = int(os.environ.get('PFB', 8))
    end = name + "_end"; fin = name + "_fin"
    idle = name + "_aux" if qkv else end
    if qkv: k.auxlabs = (idle, end); x_srd(k)
    RX = R_X if qkv else 8
    k(f"""s_cmp_ge_u32 s2, {nwg}
    s_cbranch_scc1 {idle}
    v_and_b32 v1, 63, v0
    s_and_b32 s24, s2, 7
    s_lshr_b32 s25, s2, 3
    s_mov_b32 s28, s3
    s_lshr_b32 s26, s24, 2
    s_mul_i32 s26, s26, {per}
    s_add_u32 s26, s26, s25
    s_and_b32 s24, s24, 3
    s_lshl_b32 s24, s24, 2
    s_and_b32 s25, s26, 3
    s_add_u32 s24, s24, s25
    s_lshr_b32 s25, s26, 2
    s_mul_i32 s26, s24, 344
    s_lshr_b32 s26, s26, 8
    s_add_u32 s27, s26, 1""")
    stamp(k, 0)
    def dopoll():
        if qkv:
            l = k.newlab("nq")
            k(f"s_cmp_eq_u32 s{SL}, 0\ns_cbranch_scc1 {l}")
            poll(k, 26, 27, CX, 10, name)
            k.lab(l)
        else:
            poll(k, 26, 27, CW, 10, name)
    k(f"s_cmp_ge_u32 s28, 4\ns_cbranch_scc0 {name}_cons")
    k(f"""s_sub_u32 s28, s28, 4
    s_lshl_b32 s29, s24, 11
    s_lshl_b32 s30, s28, 16
    s_add_u32 s29, s29, s30
    v_lshlrev_b32 v3, 4, v1
    v_add_u32 v4, s29, v3
    v_add_u32 v6, {PL - 2048}, v4
    v_lshrrev_b32 v8, 4, v1
    v_and_b32 v9, 15, v1
    v_lshlrev_b32 v10, 2, v8
    v_xor_b32 v9, v9, v10""")
    k("v_mov_b32 v12, v4\nv_mov_b32 v13, v4\nv_mov_b32 v14, v6\nv_mov_b32 v15, v6")
    k(f"s_add_u32 s34, s5, {xoff}\ns_mov_b32 s39, {8*PL}")
    if qkv:
        ln_ = k.newlab("nat")
        k(f"""s_cmp_eq_u32 s5, 0
        s_cbranch_scc0 {ln_}
        s_mov_b32 s34, 0
        s_mov_b32 s39, 128
        s_lshl_b32 s29, s24, 7
        s_lshl_b32 s30, s28, 5
        s_add_u32 s29, s29, s30
        v_lshrrev_b32 v16, 3, v1
        v_and_b32 v17, 7, v1
        v_add_u32 v18, s30, v16
        v_xor_b32 v18, v18, v17
        v_lshlrev_b32 v18, 4, v18
        v_lshlrev_b32 v19, 11, v17
        v_add_u32 v20, v18, v19
        v_add_u32 v21, 65536, v20
        v_add_u32 v23, 131072, v20
        v_add_u32 v16, s29, v16
        v_mul_u32_u24 v16, 1280, v16
        v_lshlrev_b32 v17, 4, v17
        v_add_u32 v12, v16, v17
        v_add_u32 v13, {8*1280}, v12
        v_add_u32 v14, {16*1280}, v12
        v_add_u32 v15, {24*1280}, v12""")
        k.lab(ln_)
    if not qkv:
        k("s_cmp_eq_u32 s25, 13\ns_cselect_b32 s31, 7, 15\nv_and_b32 v9, s31, v9")
    k(f"""s_lshl_b32 s31, s28, 4
    v_add_u32 v8, s31, v8
    s_mov_b32 s32, {RS}
    v_mul_lo_u32 v8, v8, s32
    v_lshlrev_b32 v9, 4, v9
    v_add_u32 v8, v8, v9
    s_lshl_b32 s31, s25, 8
    v_add_u32 v8, s31, v8
    v_add_u32 v9, {4*RS - 1024}, v8
    v_add_u32 v10, {8*RS - 2048}, v8
    v_add_u32 v11, {12*RS - 3072}, v8
    s_lshl_b32 s33, s28, 12
    s_mov_b32 s35, 0""")
    ROT = int(os.environ.get('ROT', 1)) if qkv else 0
    if ROT:
        k(f"""s_and_b32 s36, s25, 1
        s_cmp_eq_u32 s5, 0
        s_cselect_b32 s36, s36, 0
        s_mul_i32 s35, s36, {64*RS}
        s_lshl_b32 s36, s36, 7
        s_add_u32 s34, s34, s36""")
    vq = VQ(k)
    def issueX(st):
        slot = st % NS
        k(f"s_add_u32 m0, s33, {slot*SLOT}\ns_nop 0")
        for q in range(4):
            k(f"buffer_load_dwordx4 v{12+q}, s[{RX}:{RX+3}], s34 offen offset:{1024*q} lds")
        k(f"s_add_u32 s34, s34, s39"); vq.add(("x", st), 4)
    def issueW(st):
        slot = st % NS
        k(f"s_add_u32 m0, s33, {slot*SLOT + 16384}\ns_nop 0")
        for q in range(4):
            k(f"buffer_load_dwordx4 v{8+q}, s[{RW}:{RW+3}], s35 offen offset:{1024*q} lds")
        k(f"s_add_u32 s35, s35, {64*RS}"); vq.add(("w", st), 4)
        if ROT: k(f"s_cmp_eq_u32 s35, {640*RS}\ns_cselect_b32 s35, 0, s35")
    for st in range(AH): issueW(st)
    if qkv:
        import copy
        l1 = k.newlab("l1x")
        k(f"s_cmp_eq_u32 s5, 0\ns_cbranch_scc0 {l1}")
        vq_save = (vq.n, dict(vq.t))
        SA = 64; XR = 128
        for j in range(16): k(f"v_mov_b32 v{SA+j}, 0")
        def ldX(st):
            for q in range(4):
                r = XR + 16*(st % XD) + 4*q
                k(f"buffer_load_dwordx4 v[{r}:{r+3}], v{12+q}, s[{RX}:{RX+3}], s34 offen")
            k("s_add_u32 s34, s34, 128"); vq.add(("x", st), 4)
            if ROT: k("s_cmp_eq_u32 s34, 1280\ns_cselect_b32 s34, 0, s34")
        def wrX(st):
            sl = st % NS
            k(vq.wait(("x", st)))
            for q in range(4):
                r = XR + 16*(st % XD) + 4*q
                k(f"ds_write_b128 v{(20, 21, 23)[sl // 2]}, v[{r}:{r+3}] offset:{(sl & 1)*SLOT + 128*q}")
            for q in range(4 if os.environ.get('NOSTAT') is None else 0):
                for d in range(4):
                    r = XR + 16*(st % XD) + 4*q + d; t = 96 + 2*(d & 1)
                    k(f"""v_lshlrev_b32 v{t}, 16, v{r}
                    v_and_b32 v{t+1}, 0xffff0000, v{r}
                    v_pk_add_f32 v[{SA+2*q}:{SA+2*q+1}], v[{SA+2*q}:{SA+2*q+1}], v[{t}:{t+1}]
                    v_pk_fma_f32 v[{SA+8+2*q}:{SA+9+2*q}], v[{t}:{t+1}], v[{t}:{t+1}], v[{SA+8+2*q}:{SA+9+2*q}]""")
            k("s_waitcnt lgkmcnt(0)")
        for st in range(XD): ldX(st)
        wrX(0)
        ILV = int(os.environ.get('ILV', 1))
        def vm_list(st):
            L = []
            if st + AH < NST:
                s2 = st + AH; slot = s2 % NS
                for q in range(4):
                    t = f"s_add_u32 m0, s33, {slot*SLOT + 16384}\ns_nop 0\n" if q == 0 else ""
                    t += f"buffer_load_dwordx4 v{8+q}, s[{RW}:{RW+3}], s35 offen offset:{1024*q} lds"
                    if q == 3:
                        t += f"\ns_add_u32 s35, s35, {64*RS}"
                        if ROT: t += f"\ns_cmp_eq_u32 s35, {640*RS}\ns_cselect_b32 s35, 0, s35"
                    L.append(t)
                vq.add(("w", s2), 4)
            if st + XD < NST:
                for q in range(4):
                    r = XR + 16*((st + XD) % XD) + 4*q
                    t = f"buffer_load_dwordx4 v[{r}:{r+3}], v{12+q}, s[{RX}:{RX+3}], s34 offen"
                    if q == 3:
                        t += "\ns_add_u32 s34, s34, 128"
                        if ROT: t += "\ns_cmp_eq_u32 s34, 1280\ns_cselect_b32 s34, 0, s34"
                    L.append(t)
                vq.add(("x", st + XD), 4)
            return L
        for st in range(NST):
            k(vq.wait(("w", st)))
            if st in (5, 6): stamp(k, 5 + 6*(st - 5))
            k("s_barrier")
            if st in (4, 5, 6): stamp(k, 6*(st - 4))
            if not ILV:
                if st + AH < NST: issueW(st + AH)
                if st + 1 < NST:
                    if st + XD < NST: ldX(st + XD)
                    wrX(st + 1)
            elif st + 1 < NST:
                s1 = st + 1; sl = s1 % NS
                k(vq.wait(("x", s1)))
                if st in (4, 5): stamp(k, 1 + 6*(st - 4))
                for q in range(4):
                    r = XR + 16*(s1 % XD) + 4*q
                    k(f"ds_write_b128 v{(20, 21, 23)[sl // 2]}, v[{r}:{r+3}] offset:{(sl & 1)*SLOT + 128*q}")
                if st in (4, 5): stamp(k, 2 + 6*(st - 4))
                L = vm_list(st)
                for g in range(16):
                    if g % 2 == 0 and L: k(L.pop(0))
                    q, d = divmod(g, 4)
                    r = XR + 16*(s1 % XD) + 4*q + d; t = 96 + 2*(d & 1)
                    k(f"""v_lshlrev_b32 v{t}, 16, v{r}
                    v_and_b32 v{t+1}, 0xffff0000, v{r}
                    v_pk_add_f32 v[{SA+2*q}:{SA+2*q+1}], v[{SA+2*q}:{SA+2*q+1}], v[{t}:{t+1}]
                    v_pk_fma_f32 v[{SA+8+2*q}:{SA+9+2*q}], v[{t}:{t+1}], v[{t}:{t+1}], v[{SA+8+2*q}:{SA+9+2*q}]""")
                assert not L
                if st in (4, 5): stamp(k, 3 + 6*(st - 4))
                k("s_waitcnt lgkmcnt(0)")
        for j in range(4):
            k(f"v_add_f32 v{80+2*j}, v{SA+2*j}, v{SA+2*j+1}\nv_add_f32 v{81+2*j}, v{SA+8+2*j}, v{SA+9+2*j}")
        for b in range(3):
            k(f"v_xor_b32 v22, {1 << b}, v1\nv_lshlrev_b32 v22, 2, v22")
            for j in range(8): k(f"ds_bpermute_b32 v{88+j}, v22, v{80+j}")
            k("s_waitcnt lgkmcnt(0)")
            for j in range(8): k(f"v_add_f32 v{80+j}, v{80+j}, v{88+j}")
        for j in range(8): k(f"v_mul_f32 v{80+j}, 0.5, v{80+j}")
        k(f"""v_lshrrev_b32 v22, 3, v1
        s_lshl_b32 s29, s28, 5
        v_add_u32 v22, s29, v22
        v_lshlrev_b32 v22, 3, v22
        v_add_u32 v22, {STL}, v22""")
        for j in range(4): k(f"ds_write_b64 v22, v[{80+2*j}:{81+2*j}] offset:{64*j}")
        k("s_waitcnt lgkmcnt(0)\ns_barrier")
        stamp_flush(k, 12, 3, 4)
        if PFT & 1: pf_lin(k, R_WO, 8, 25)
        k(f"s_branch {fin}2")
        k.lab(l1)
        vq.n, vq.t = vq_save
    dopoll()
    for st in range(AH): issueX(st)
    for st in range(NST):
        k(vq.wait(("x", st), ("w", st)) + "\ns_barrier")
        if st + AH < NST: issueX(st + AH); issueW(st + AH)
    def pftail():
        if not (PFT & (1 if qkv else 4)): return
        if qkv: pf_lin(k, R_WO, 8, 25)
        else: pf_lin(k, R_W2, 20, 27)
    pftail()
    k(f"s_branch {fin}2")
    k.lab(name + "_cons")
    ACC = 64; FR = 128; CS = 160; B1 = 192; ST = 208
    k(f"""s_and_b32 s29, s28, 1
    s_lshr_b32 s30, s28, 1
    v_lshrrev_b32 v3, 5, v1
    v_and_b32 v4, 31, v1
    s_lshl_b32 s31, s24, 7
    s_lshl_b32 s32, s29, 6
    s_add_u32 s31, s31, s32
    v_add_u32 v5, s31, v4
    v_lshlrev_b32 v6, 3, v5
    v_mul_u32_u24 v7, {5*16384}, v3
    v_add_u32 v6, v6, v7""")
    k(f"""s_lshl_b32 s33, s25, 7
    s_lshl_b32 s34, s30, 6
    s_add_u32 s33, s33, s34
    v_lshlrev_b32 v7, 2, v3
    v_add_u32 v7, s33, v7
    v_lshlrev_b32 v8, 2, v7
    v_lshlrev_b32 v9, 1, v7
    s_mov_b32 s34, {csoff}""")
    def cs_loads():
        for ft in range(2):
            for i in range(4):
                r = CS + 16*ft + 4*i
                k(f"buffer_load_dwordx4 v[{r}:{r+3}], v8, s[8:11], s34 offen offset:{(32*ft+8*i)*4}")
    if not qkv: cs_loads()
    if not qkv:
        for ft in range(2):
            for i in range(4):
                r = B1 + 8*ft + 2*i
                k(f"buffer_load_dwordx2 v[{r}:{r+1}], v9, s[{R_B1}:{R_B1+3}], 0 offen offset:{(32*ft+8*i)*2}")
    k(f"""v_lshlrev_b32 v10, 11, v3
    s_lshl_b32 s34, s29, 6
    v_add_u32 v11, s34, v4
    v_lshlrev_b32 v11, 4, v11
    v_add_u32 v10, v10, v11
    v_lshrrev_b32 v16, 2, v1
    v_and_b32 v16, 3, v16
    v_lshlrev_b32 v17, 3, v3
    v_add_u32 v17, v17, v16
    v_lshlrev_b32 v17, 8, v17
    s_lshl_b32 s34, s30, 3
    v_lshlrev_b32 v18, 2, v16
    v_xor_b32 v18, s34, v18
    v_lshrrev_b32 v19, 4, v1
    v_and_b32 v19, 1, v19
    v_lshlrev_b32 v19, 1, v19
    v_add_u32 v18, v18, v19
    v_lshrrev_b32 v19, 1, v1
    v_and_b32 v19, 1, v19
    v_add_u32 v18, v18, v19
    v_lshlrev_b32 v18, 4, v18
    v_and_b32 v19, 1, v1
    v_lshlrev_b32 v19, 3, v19
    v_add_u32 v18, v18, v19
    v_add_u32 v11, v17, v18
    v_add_u32 v11, 16384, v11
    v_xor_b32 v12, 64, v11
    v_add_u32 v13, 65536, v10
    v_add_u32 v14, 65536, v11
    v_add_u32 v15, 65536, v12
    v_add_u32 v56, 131072, v10
    v_add_u32 v57, 131072, v11
    v_add_u32 v62, 131072, v12""")
    if qkv:
        lp_ = k.newlab("xp"); lq_ = k.newlab("xq")
        k(f"s_cmp_eq_u32 s5, 0\ns_cbranch_scc1 {lp_}")
        for hi in range(NG):
            for ks in range(4):
                for tt in range(2):
                    k(f"v_add_u32 v{32+8*hi+2*ks+tt}, {hi*65536 + ks*4096 + tt*512}, v10")
        k(f"s_branch {lq_}")
        k.lab(lp_)
        k("""s_lshl_b32 s38, s29, 6
        v_add_u32 v16, s38, v4""")
        for ks in range(4):
            k(f"""v_add_u32 v18, {2*ks}, v3
            v_xor_b32 v17, v16, v18
            v_lshlrev_b32 v17, 4, v17
            v_lshlrev_b32 v18, 11, v18
            v_add_u32 v18, v18, v17""")
            for hi in range(NG):
                for tt in range(2):
                    k(f"v_add_u32 v{32+8*hi+2*ks+tt}, {hi*65536 + tt*512}, v18")
        k.lab(lq_)
    def reads(gi):
        st, ks = divmod(gi, 4); slot = st % NS
        hi = slot // 2; base = (slot & 1) * SLOT + ks * 4096
        f = FR + 16 * (gi & 1)
        aX = (10, 13, 56)[hi]; aW = ((11, 12), (14, 15), (57, 62))[hi]
        L = []
        for ft in range(2):
            L.append(f"ds_read_b64_tr_b16 v[{f+4*ft}:{f+4*ft+1}], v{aW[ft]} offset:{base}")
            L.append(f"ds_read_b64_tr_b16 v[{f+4*ft+2}:{f+4*ft+3}], v{aW[ft]} offset:{base+1024}")
        for tt in range(2):
            if qkv: L.append(f"ds_read_b128 v[{f+8+4*tt}:{f+8+4*tt+3}], v{32+8*hi+2*ks+tt} offset:{(slot & 1)*SLOT}")
            else: L.append(f"ds_read_b128 v[{f+8+4*tt}:{f+8+4*tt+3}], v{aX} offset:{base+512*tt}")
        return [L[0], L[1], L[4], L[2], L[3], L[5]]
    def prefetch(lst_):
        k("s_lshl_b32 s38, s2, 12\nv_and_b32 v63, 255, v0\nv_lshlrev_b32 v63, 4, v63\nv_add_u32 v63, s38, v63")
        for srd, size in lst_:
            n = (size + 983039) // 983040
            for i in range(n):
                k(f"s_mov_b32 s38, {i*983040}\nbuffer_load_dwordx4 v[240:243], v63, s[{srd}:{srd+3}], s38 offen")
    if qkv and PFA == 2:
        lp0 = k.newlab("pfa")
        k(f"""s_cmp_eq_u32 s5, 0
        s_cbranch_scc0 {lp0}
        v_and_b32 v63, 255, v0
        s_and_b32 s38, s24, 3
        s_mul_i32 s38, s38, {160*3840}
        s_lshl_b32 s37, s25, 8
        s_add_u32 s38, s38, s37
        v_lshrrev_b32 v20, 2, v63
        v_mul_u32_u24 v20, 3840, v20
        v_and_b32 v21, 3, v63
        v_lshlrev_b32 v21, 6, v21
        v_add_u32 v20, v20, v21""")
        for j in range(3):
            k(f"buffer_load_dword v240, v20, s[{R_WQ}:{R_WQ+3}], s38 offen\ns_add_u32 s38, s38, {64*3840}")
        k(f"""s_and_b32 s37, s25, 7
        s_mul_i32 s37, s37, 320
        s_mul_i32 s38, s24, {128*1280}
        s_mov_b32 s36, 3277""")
        for j in range(2):
            k(f"""v_add_u32 v21, s37, v63
            v_mul_lo_u32 v22, v21, s36
            v_lshrrev_b32 v22, 16, v22
            v_mul_u32_u24 v23, 20, v22
            v_sub_u32 v21, v21, v23
            v_lshlrev_b32 v21, 6, v21
            v_mul_u32_u24 v22, 1280, v22
            v_add_u32 v21, v21, v22
            buffer_load_dword v240, v21, s[{R_X}:{R_X+3}], s38 offen
            s_add_u32 s37, s37, 256""")
        k.lab(lp0)
    if qkv and PFA == 1:
        lp0 = k.newlab("pfa")
        k(f"s_cmp_eq_u32 s5, 0\ns_cbranch_scc0 {lp0}")
        prefetch([(R_WQ, 640*3840), (R_X, 2048*1280)])
        k.lab(lp0)
    dopoll()
    stamp(k, 1)
    lst = k.newlab("st")
    if qkv: k(f"s_cmp_eq_u32 s5, 0\ns_cbranch_scc1 {lst}")
    for pp in range(5):
        k(f"s_add_u32 s38, s5, {soff + pp*16384}")
        for tt in range(2):
            r = ST + 4*pp + 2*tt
            k(f"buffer_load_dwordx2 v[{r}:{r+1}], v6, s[8:11], s38 offen offset:{256*tt}")
    k.lab(lst)
    k("s_barrier")
    stamp(k, 2)
    for l in reads(0): k(l)
    for gi in range(NST * 4):
        st, ks = divmod(gi, 4)
        f = FR + 16 * (gi & 1)
        if not CNT or (ks == 3 and not LAG): k("s_waitcnt lgkmcnt(0)")
        if ks == 3 and st + 1 < NST: k("s_barrier")
        if gi in (3, 19): stamp(k, 3 if gi == 3 else 4)
        if qkv and gi in (7, 11, 27): stamp(k, {7: 13, 11: 9, 27: 10}[gi])
        R = reads(gi + 1) if gi + 1 < NST * 4 else []
        ri = 0
        for mi, (ft, tt) in enumerate([(0, 0), (1, 0), (0, 1), (1, 1)] if CNT else [(0, 0), (0, 1), (1, 0), (1, 1)]):
            if CNT and mi < 3:
                k(f"s_waitcnt lgkmcnt({(3, 1, 0)[mi] + (ri if R else 0)})")
            a = ACC + 32 * ft + 16 * tt
            c = "0" if gi == 0 else f"v[{a}:{a+15}]"
            k(f"v_mfma_f32_32x32x16_bf16 v[{a}:{a+15}], v[{f+4*ft}:{f+4*ft+3}], v[{f+8+4*tt}:{f+8+4*tt+3}], {c}")
            for _ in range(2):
                if ri < len(R): k(R[ri]); ri += 1
        if qkv and gi == PFB:
            lp1 = k.newlab("pfb")
            k(f"s_cmp_eq_u32 s5, 0\ns_cbranch_scc0 {lp1}")
            prefetch([(R_WO, 640*1280), (R_W1, 640*3456), (R_W2, 1728*1280)])
            k.lab(lp1)
        if qkv and gi == CSCHK:
            lc_ = k.newlab("ck")
            k(f"s_cmp_eq_u32 s5, 0\ns_cbranch_scc0 {lc_}")
            stamp(k, 11)
            dbg_wait(k, 1, name)
            stamp(k, 12)
            k.lab(lc_)
            k(f"s_mov_b32 s34, {csoff}")
            cs_loads()
    if not qkv:
        k(f"s_cmp_eq_u32 s25, 13\ns_cselect_b32 s34, s30, 0\ns_cmp_eq_u32 s34, 1\ns_cbranch_scc1 {fin}")
    stamp(k, 5)
    k("s_waitcnt vmcnt(0)")
    stamp(k, 6)
    for pp in range(1, 5):
        k(f"v_pk_add_f32 v[{ST}:{ST+1}], v[{ST}:{ST+1}], v[{ST+4*pp}:{ST+4*pp+1}]\nv_pk_add_f32 v[{ST+2}:{ST+3}], v[{ST+2}:{ST+3}], v[{ST+4*pp+2}:{ST+4*pp+3}]")
    if qkv:
        ls_ = k.newlab("lz")
        k(f"""s_cmp_eq_u32 s5, 0
        s_cbranch_scc0 {ls_}
        s_lshl_b32 s38, s29, 6
        v_add_u32 v20, s38, v4
        v_lshlrev_b32 v20, 3, v20
        v_add_u32 v20, {STL}, v20
        s_barrier
        ds_read_b64 v[{ST}:{ST+1}], v20
        ds_read_b64 v[{ST+2}:{ST+3}], v20 offset:256
        s_waitcnt lgkmcnt(0)""")
        k.lab(ls_)
    for j in range(4): swap_add(k, ST + j, 20)
    sc = 20 ** -0.5 * math.log2(math.e)
    if qkv:
        k(f"s_cmp_lt_u32 s25, 5\ns_cselect_b32 s34, {f2h(sc)}, 1.0")
    k(f"s_mov_b32 s35, {f2h(1/640)}\ns_mov_b32 s36, {f2h(1e-5)}")
    for tt in range(2):
        m = 22 + 4*tt; r = 24 + 4*tt
        k(f"""v_mul_f32 v{m}, s35, v{ST+2*tt}
        v_mul_f32 v20, s35, v{ST+2*tt+1}
        v_fma_f32 v20, -v{m}, v{m}, v20
        v_add_f32 v20, s36, v20
        v_rsq_f32 v{r}, v20
        s_nop 0""")
        if qkv: k(f"v_mul_f32 v{r}, s34, v{r}")
    if not qkv:
        for ft in range(2):
            for i in range(4):
                r = B1 + 8*ft + 2*i; d = 224 + 16*ft + 4*i
                k(f"v_lshlrev_b32 v{d}, 16, v{r}\nv_and_b32 v{d+1}, 0xffff0000, v{r}\nv_lshlrev_b32 v{d+2}, 16, v{r+1}\nv_and_b32 v{d+3}, 0xffff0000, v{r+1}")
    k(f"""v_lshlrev_b32 v30, 15, v3
    v_lshlrev_b32 v31, 4, v5
    v_add_u32 v30, v30, v31
    s_lshr_b32 s37, s33, 3
    s_lshl_b32 s37, s37, 15
    s_add_u32 s37, s37, s5
    s_add_u32 s37, s37, {outoff}""")
    T = 32
    n = 0
    for ft in range(2):
        for i2 in range(2):
            for tt in range(2):
                a = ACC + 32*ft + 16*tt + 8*i2; cs = CS + 16*ft + 8*i2; m = 22 + 4*tt; r = 24 + 4*tt
                t = T + 4 * (n % 4); n += 1
                for p in range(4):
                    x = a + 2*p
                    k(f"v_pk_fma_f32 v[{x}:{x+1}], v[{m}:{m+1}], v[{cs+2*p}:{cs+2*p+1}], v[{x}:{x+1}] op_sel_hi:[0,1,1] neg_lo:[1,0,0] neg_hi:[1,0,0]")
                for p in range(4):
                    x = a + 2*p
                    if qkv:
                        k(f"v_pk_mul_f32 v[{x}:{x+1}], v[{r}:{r+1}], v[{x}:{x+1}] op_sel_hi:[0,1]")
                    else:
                        b = 224 + 16*ft + 8*i2 + 2*p
                        k(f"v_pk_fma_f32 v[{x}:{x+1}], v[{r}:{r+1}], v[{x}:{x+1}], v[{b}:{b+1}] op_sel_hi:[0,1,1]")
                if not qkv:
                    for p in range(8): k(f"v_max_f32 v{a+p}, 0, v{a+p}")
                    for p in range(4):
                        x = a + 2*p
                        k(f"v_pk_mul_f32 v[{x}:{x+1}], v[{x}:{x+1}], v[{x}:{x+1}]")
                for p in range(4):
                    k(f"v_cvt_pk_bf16_f32 v{t+p}, v{a+2*p}, v{a+2*p+1}")
                k(f"s_nop 1\nv_permlane32_swap_b32 v{t}, v{t+2}\nv_permlane32_swap_b32 v{t+1}, v{t+3}")
                k(f"s_nop 0\nbuffer_store_dwordx4 v[{t}:{t+3}], v30, s[8:11], s37 offen offset:{512*tt}{SC1}")
            k(f"s_add_u32 s37, s37, {2*PL}")
    stamp(k, 7)
    k.lab(fin)
    arrive(k, 24, CQ if qkv else CH, nowait=fin + '2')
    stamp(k, 8)
    stamp_flush(k, slot, 3)
    k.lab(end)

import struct
def f2h(x):
    return "0x%08x" % struct.unpack("<I", struct.pack("<f", x))[0]
```

```python
import os
from g0 import *
import math
def emit_lng(k, kind, slot=1):
    qkv = kind == 'qkv'
    name = k.newlab(kind)
    RS = 3840 if qkv else 3456
    per = 30 if qkv else 28
    nwg = per * 8
    xoff = WS_XIN if qkv else WS_X1
    soff = WS_SIN if qkv else WS_S1
    outoff = WS_QKV if qkv else WS_H
    csoff = WS_CS if qkv else WS_CS + 8192
    RW = R_WQ if qkv else R_W1
    NST = 10; NS = int(os.environ.get('NSL', 5)); SLOT = 32768; CSCHK = 30; STL = 131072 if NS == 4 else 0
    CNT = int(os.environ.get('CNT', 1)); LAG = int(os.environ.get('LAG', 1)); AH = NS - 1 - LAG
    NG = (NS + 1) // 2; XD = int(os.environ.get('XD', 4))
    PFT = int(os.environ.get('PFT', 15))
    PFA = int(os.environ.get('PFA', 1)); PFB = int(os.environ.get('PFB', 8))
    end = name + "_end"; fin = name + "_fin"
    idle = name + "_aux" if qkv else end
    if qkv: k.auxlabs = (idle, end); x_srd(k)
    RX = R_X if qkv else 8
    k(f"""s_cmp_ge_u32 s2, {nwg}
    s_cbranch_scc1 {idle}
    v_and_b32 v1, 63, v0
    s_and_b32 s24, s2, 7
    s_lshr_b32 s25, s2, 3
    s_mov_b32 s28, s3
    s_lshr_b32 s26, s24, 2
    s_mul_i32 s26, s26, {per}
    s_add_u32 s26, s26, s25
    s_and_b32 s24, s24, 3
    s_lshl_b32 s24, s24, 2
    s_and_b32 s25, s26, 3
    s_add_u32 s24, s24, s25
    s_lshr_b32 s25, s26, 2
    s_mul_i32 s26, s24, 344
    s_lshr_b32 s26, s26, 8
    s_add_u32 s27, s26, 1""")
    stamp(k, 0)
    def dopoll():
        if qkv:
            l = k.newlab("nq")
            k(f"s_cmp_eq_u32 s{SL}, 0\ns_cbranch_scc1 {l}")
            poll(k, 26, 27, CX, 10, name)
            k.lab(l)
        else:
            poll(k, 26, 27, CW, 10, name)
    k(f"s_cmp_ge_u32 s28, 4\ns_cbranch_scc0 {name}_cons")
    PRIO = int(os.environ.get('PRIO', 0))
    if PRIO & 1 and qkv: k("s_setprio 3")
    if PRIO & 2 and not qkv: k("s_setprio 3")
    k(f"""s_sub_u32 s28, s28, 4
    s_lshl_b32 s29, s24, 11
    s_lshl_b32 s30, s28, 16
    s_add_u32 s29, s29, s30
    v_lshlrev_b32 v3, 4, v1
    v_add_u32 v4, s29, v3
    v_add_u32 v6, {PL - 2048}, v4
    v_lshrrev_b32 v8, 4, v1
    v_and_b32 v9, 15, v1
    v_lshlrev_b32 v10, 2, v8
    v_xor_b32 v9, v9, v10""")
    k("v_mov_b32 v12, v4\nv_mov_b32 v13, v4\nv_mov_b32 v14, v6\nv_mov_b32 v15, v6")
    k(f"s_add_u32 s34, s5, {xoff}\ns_mov_b32 s39, {8*PL}")
    if qkv:
        ln_ = k.newlab("nat")
        k(f"""s_cmp_eq_u32 s5, 0
        s_cbranch_scc0 {ln_}
        s_mov_b32 s34, 0
        s_mov_b32 s39, 128
        s_lshl_b32 s29, s24, 7
        s_lshl_b32 s30, s28, 5
        s_add_u32 s29, s29, s30
        v_lshrrev_b32 v16, 3, v1
        v_and_b32 v17, 7, v1
        v_add_u32 v18, s30, v16
        v_xor_b32 v18, v18, v17
        v_lshlrev_b32 v18, 4, v18
        v_lshlrev_b32 v19, 11, v17
        v_add_u32 v20, v18, v19
        v_add_u32 v21, 65536, v20
        v_add_u32 v23, 131072, v20
        v_add_u32 v16, s29, v16
        v_mul_u32_u24 v16, 1280, v16
        v_lshlrev_b32 v17, 4, v17
        v_add_u32 v12, v16, v17
        v_add_u32 v13, {8*1280}, v12
        v_add_u32 v14, {16*1280}, v12
        v_add_u32 v15, {24*1280}, v12""")
        k.lab(ln_)
    if not qkv:
        k("s_cmp_eq_u32 s25, 13\ns_cselect_b32 s31, 7, 15\nv_and_b32 v9, s31, v9")
    k(f"""s_lshl_b32 s31, s28, 4
    v_add_u32 v8, s31, v8
    s_mov_b32 s32, {RS}
    v_mul_lo_u32 v8, v8, s32
    v_lshlrev_b32 v9, 4, v9
    v_add_u32 v8, v8, v9
    s_lshl_b32 s31, s25, 8
    v_add_u32 v8, s31, v8
    v_add_u32 v9, {4*RS - 1024}, v8
    v_add_u32 v10, {8*RS - 2048}, v8
    v_add_u32 v11, {12*RS - 3072}, v8
    s_lshl_b32 s33, s28, 12
    s_mov_b32 s35, 0""")
    ROT = int(os.environ.get('ROT', 1)) if qkv else 0
    if ROT:
        k(f"""s_and_b32 s36, s25, 1
        s_cmp_eq_u32 s5, 0
        s_cselect_b32 s36, s36, 0
        s_mul_i32 s35, s36, {64*RS}
        s_lshl_b32 s36, s36, 7
        s_add_u32 s34, s34, s36""")
    vq = VQ(k)
    def issueX(st):
        slot = st % NS
        k(f"s_add_u32 m0, s33, {slot*SLOT}\ns_nop 0")
        for q in range(4):
            k(f"buffer_load_dwordx4 v{12+q}, s[{RX}:{RX+3}], s34 offen offset:{1024*q} lds")
        k(f"s_add_u32 s34, s34, s39"); vq.add(("x", st), 4)
    def issueW(st):
        slot = st % NS
        k(f"s_add_u32 m0, s33, {slot*SLOT + 16384}\ns_nop 0")
        for q in range(4):
            k(f"buffer_load_dwordx4 v{8+q}, s[{RW}:{RW+3}], s35 offen offset:{1024*q} lds")
        k(f"s_add_u32 s35, s35, {64*RS}"); vq.add(("w", st), 4)
        if ROT: k(f"s_cmp_eq_u32 s35, {640*RS}\ns_cselect_b32 s35, 0, s35")
    for st in range(AH): issueW(st)
    if qkv:
        import copy
        l1 = k.newlab("l1x")
        k(f"s_cmp_eq_u32 s5, 0\ns_cbranch_scc0 {l1}")
        vq_save = (vq.n, dict(vq.t))
        SA = 64; XR = 128
        for j in range(16): k(f"v_mov_b32 v{SA+j}, 0")
        def ldX(st):
            for q in range(4):
                r = XR + 16*(st % XD) + 4*q
                k(f"buffer_load_dwordx4 v[{r}:{r+3}], v{12+q}, s[{RX}:{RX+3}], s34 offen")
            k("s_add_u32 s34, s34, 128"); vq.add(("x", st), 4)
            if ROT: k("s_cmp_eq_u32 s34, 1280\ns_cselect_b32 s34, 0, s34")
        def wrX(st):
            sl = st % NS
            k(vq.wait(("x", st)))
            for q in range(4):
                r = XR + 16*(st % XD) + 4*q
                k(f"ds_write_b128 v{(20, 21, 23)[sl // 2]}, v[{r}:{r+3}] offset:{(sl & 1)*SLOT + 128*q}")
            for q in range(4 if os.environ.get('NOSTAT') is None else 0):
                for d in range(4):
                    r = XR + 16*(st % XD) + 4*q + d; t = 96 + 2*(d & 1)
                    k(f"""v_lshlrev_b32 v{t}, 16, v{r}
                    v_and_b32 v{t+1}, 0xffff0000, v{r}
                    v_pk_add_f32 v[{SA+2*q}:{SA+2*q+1}], v[{SA+2*q}:{SA+2*q+1}], v[{t}:{t+1}]
                    v_pk_fma_f32 v[{SA+8+2*q}:{SA+9+2*q}], v[{t}:{t+1}], v[{t}:{t+1}], v[{SA+8+2*q}:{SA+9+2*q}]""")
            k("s_waitcnt lgkmcnt(0)")
        for st in range(XD): ldX(st)
        wrX(0)
        ILV = int(os.environ.get('ILV', 1))
        def vm_list(st):
            L = []
            if st + AH < NST:
                s2 = st + AH; slot = s2 % NS
                for q in range(4):
                    t = f"s_add_u32 m0, s33, {slot*SLOT + 16384}\ns_nop 0\n" if q == 0 else ""
                    t += f"buffer_load_dwordx4 v{8+q}, s[{RW}:{RW+3}], s35 offen offset:{1024*q} lds"
                    if q == 3:
                        t += f"\ns_add_u32 s35, s35, {64*RS}"
                        if ROT: t += f"\ns_cmp_eq_u32 s35, {640*RS}\ns_cselect_b32 s35, 0, s35"
                    L.append(t)
                vq.add(("w", s2), 4)
            if st + XD < NST:
                for q in range(4):
                    r = XR + 16*((st + XD) % XD) + 4*q
                    t = f"buffer_load_dwordx4 v[{r}:{r+3}], v{12+q}, s[{RX}:{RX+3}], s34 offen"
                    if q == 3:
                        t += "\ns_add_u32 s34, s34, 128"
                        if ROT: t += "\ns_cmp_eq_u32 s34, 1280\ns_cselect_b32 s34, 0, s34"
                    L.append(t)
                vq.add(("x", st + XD), 4)
            return L
        for st in range(NST):
            k(vq.wait(("w", st)))
            if st in (5, 6): stamp(k, 5 + 6*(st - 5))
            k("s_barrier")
            if st in (4, 5, 6): stamp(k, 6*(st - 4))
            if not ILV:
                if st + AH < NST: issueW(st + AH)
                if st + 1 < NST:
                    if st + XD < NST: ldX(st + XD)
                    wrX(st + 1)
            elif st + 1 < NST:
                s1 = st + 1; sl = s1 % NS
                k(vq.wait(("x", s1)))
                if st in (4, 5): stamp(k, 1 + 6*(st - 4))
                for q in range(4):
                    r = XR + 16*(s1 % XD) + 4*q
                    k(f"ds_write_b128 v{(20, 21, 23)[sl // 2]}, v[{r}:{r+3}] offset:{(sl & 1)*SLOT + 128*q}")
                if st in (4, 5): stamp(k, 2 + 6*(st - 4))
                L = vm_list(st)
                for g in range(16):
                    if g % 2 == 0 and L: k(L.pop(0))
                    q, d = divmod(g, 4)
                    r = XR + 16*(s1 % XD) + 4*q + d; t = 96 + 2*(d & 1)
                    k(f"""v_lshlrev_b32 v{t}, 16, v{r}
                    v_and_b32 v{t+1}, 0xffff0000, v{r}
                    v_pk_add_f32 v[{SA+2*q}:{SA+2*q+1}], v[{SA+2*q}:{SA+2*q+1}], v[{t}:{t+1}]
                    v_pk_fma_f32 v[{SA+8+2*q}:{SA+9+2*q}], v[{t}:{t+1}], v[{t}:{t+1}], v[{SA+8+2*q}:{SA+9+2*q}]""")
                assert not L
                if st in (4, 5): stamp(k, 3 + 6*(st - 4))
                k("s_waitcnt lgkmcnt(0)")
        for j in range(4):
            k(f"v_add_f32 v{80+2*j}, v{SA+2*j}, v{SA+2*j+1}\nv_add_f32 v{81+2*j}, v{SA+8+2*j}, v{SA+9+2*j}")
        for b in range(3):
            k(f"v_xor_b32 v22, {1 << b}, v1\nv_lshlrev_b32 v22, 2, v22")
            for j in range(8): k(f"ds_bpermute_b32 v{88+j}, v22, v{80+j}")
            k("s_waitcnt lgkmcnt(0)")
            for j in range(8): k(f"v_add_f32 v{80+j}, v{80+j}, v{88+j}")
        for j in range(8): k(f"v_mul_f32 v{80+j}, 0.5, v{80+j}")
        k(f"""v_lshrrev_b32 v22, 3, v1
        s_lshl_b32 s29, s28, 5
        v_add_u32 v22, s29, v22
        v_lshlrev_b32 v22, 3, v22
        v_add_u32 v22, {STL}, v22""")
        for j in range(4): k(f"ds_write_b64 v22, v[{80+2*j}:{81+2*j}] offset:{64*j}")
        k("s_waitcnt lgkmcnt(0)\ns_barrier")
        stamp_flush(k, 12, 3, 4)
        if PFT & 1: pf_lin(k, R_WO, 8, 25)
        k(f"s_branch {fin}2")
        k.lab(l1)
        vq.n, vq.t = vq_save
    dopoll()
    for st in range(AH): issueX(st)
    for st in range(NST):
        k(vq.wait(("x", st), ("w", st)) + "\ns_barrier")
        if st + AH < NST: issueX(st + AH); issueW(st + AH)
    def pftail():
        if not (PFT & (1 if qkv else 4)): return
        if qkv: pf_lin(k, R_WO, 8, 25)
        else: pf_lin(k, R_W2, 20, 27)
    pftail()
    k(f"s_branch {fin}2")
    k.lab(name + "_cons")
    if int(os.environ.get("PRIO", 0)) & 4: k("s_setprio 2")
    ACC = 64; FR = 128; CS = 160; B1 = 192; ST = 208
    k(f"""s_and_b32 s29, s28, 1
    s_lshr_b32 s30, s28, 1
    v_lshrrev_b32 v3, 5, v1
    v_and_b32 v4, 31, v1
    s_lshl_b32 s31, s24, 7
    s_lshl_b32 s32, s29, 6
    s_add_u32 s31, s31, s32
    v_add_u32 v5, s31, v4
    v_lshlrev_b32 v6, 3, v5
    v_mul_u32_u24 v7, {5*16384}, v3
    v_add_u32 v6, v6, v7""")
    k(f"""s_lshl_b32 s33, s25, 7
    s_lshl_b32 s34, s30, 6
    s_add_u32 s33, s33, s34
    v_lshlrev_b32 v7, 2, v3
    v_add_u32 v7, s33, v7
    v_lshlrev_b32 v8, 2, v7
    v_lshlrev_b32 v9, 1, v7
    s_mov_b32 s34, {csoff}""")
    def cs_loads():
        for ft in range(2):
            for i in range(4):
                r = CS + 16*ft + 4*i
                k(f"buffer_load_dwordx4 v[{r}:{r+3}], v8, s[8:11], s34 offen offset:{(32*ft+8*i)*4}")
    if not qkv: cs_loads()
    if not qkv:
        for ft in range(2):
            for i in range(4):
                r = B1 + 8*ft + 2*i
                k(f"buffer_load_dwordx2 v[{r}:{r+1}], v9, s[{R_B1}:{R_B1+3}], 0 offen offset:{(32*ft+8*i)*2}")
    k(f"""v_lshlrev_b32 v10, 11, v3
    s_lshl_b32 s34, s29, 6
    v_add_u32 v11, s34, v4
    v_lshlrev_b32 v11, 4, v11
    v_add_u32 v10, v10, v11
    v_lshrrev_b32 v16, 2, v1
    v_and_b32 v16, 3, v16
    v_lshlrev_b32 v17, 3, v3
    v_add_u32 v17, v17, v16
    v_lshlrev_b32 v17, 8, v17
    s_lshl_b32 s34, s30, 3
    v_lshlrev_b32 v18, 2, v16
    v_xor_b32 v18, s34, v18
    v_lshrrev_b32 v19, 4, v1
    v_and_b32 v19, 1, v19
    v_lshlrev_b32 v19, 1, v19
    v_add_u32 v18, v18, v19
    v_lshrrev_b32 v19, 1, v1
    v_and_b32 v19, 1, v19
    v_add_u32 v18, v18, v19
    v_lshlrev_b32 v18, 4, v18
    v_and_b32 v19, 1, v1
    v_lshlrev_b32 v19, 3, v19
    v_add_u32 v18, v18, v19
    v_add_u32 v11, v17, v18
    v_add_u32 v11, 16384, v11
    v_xor_b32 v12, 64, v11
    v_add_u32 v13, 65536, v10
    v_add_u32 v14, 65536, v11
    v_add_u32 v15, 65536, v12
    v_add_u32 v56, 131072, v10
    v_add_u32 v57, 131072, v11
    v_add_u32 v62, 131072, v12""")
    if qkv:
        lp_ = k.newlab("xp"); lq_ = k.newlab("xq")
        k(f"s_cmp_eq_u32 s5, 0\ns_cbranch_scc1 {lp_}")
        for hi in range(NG):
            for ks in range(4):
                for tt in range(2):
                    k(f"v_add_u32 v{32+8*hi+2*ks+tt}, {hi*65536 + ks*4096 + tt*512}, v10")
        k(f"s_branch {lq_}")
        k.lab(lp_)
        k("""s_lshl_b32 s38, s29, 6
        v_add_u32 v16, s38, v4""")
        for ks in range(4):
            k(f"""v_add_u32 v18, {2*ks}, v3
            v_xor_b32 v17, v16, v18
            v_lshlrev_b32 v17, 4, v17
            v_lshlrev_b32 v18, 11, v18
            v_add_u32 v18, v18, v17""")
            for hi in range(NG):
                for tt in range(2):
                    k(f"v_add_u32 v{32+8*hi+2*ks+tt}, {hi*65536 + tt*512}, v18")
        k.lab(lq_)
    def reads(gi):
        st, ks = divmod(gi, 4); slot = st % NS
        hi = slot // 2; base = (slot & 1) * SLOT + ks * 4096
        f = FR + 16 * (gi & 1)
        aX = (10, 13, 56)[hi]; aW = ((11, 12), (14, 15), (57, 62))[hi]
        L = []
        for ft in range(2):
            L.append(f"ds_read_b64_tr_b16 v[{f+4*ft}:{f+4*ft+1}], v{aW[ft]} offset:{base}")
            L.append(f"ds_read_b64_tr_b16 v[{f+4*ft+2}:{f+4*ft+3}], v{aW[ft]} offset:{base+1024}")
        for tt in range(2):
            if qkv: L.append(f"ds_read_b128 v[{f+8+4*tt}:{f+8+4*tt+3}], v{32+8*hi+2*ks+tt} offset:{(slot & 1)*SLOT}")
            else: L.append(f"ds_read_b128 v[{f+8+4*tt}:{f+8+4*tt+3}], v{aX} offset:{base+512*tt}")
        return [L[0], L[1], L[4], L[2], L[3], L[5]]
    def prefetch(lst_):
        k("s_lshl_b32 s38, s2, 12\nv_and_b32 v63, 255, v0\nv_lshlrev_b32 v63, 4, v63\nv_add_u32 v63, s38, v63")
        for srd, size in lst_:
            n = (size + 983039) // 983040
            for i in range(n):
                k(f"s_mov_b32 s38, {i*983040}\nbuffer_load_dwordx4 v[240:243], v63, s[{srd}:{srd+3}], s38 offen")
    if qkv and PFA == 2:
        lp0 = k.newlab("pfa")
        k(f"""s_cmp_eq_u32 s5, 0
        s_cbranch_scc0 {lp0}
        v_and_b32 v63, 255, v0
        s_and_b32 s38, s24, 3
        s_mul_i32 s38, s38, {160*3840}
        s_lshl_b32 s37, s25, 8
        s_add_u32 s38, s38, s37
        v_lshrrev_b32 v20, 2, v63
        v_mul_u32_u24 v20, 3840, v20
        v_and_b32 v21, 3, v63
        v_lshlrev_b32 v21, 6, v21
        v_add_u32 v20, v20, v21""")
        for j in range(3):
            k(f"buffer_load_dword v240, v20, s[{R_WQ}:{R_WQ+3}], s38 offen\ns_add_u32 s38, s38, {64*3840}")
        k(f"""s_and_b32 s37, s25, 7
        s_mul_i32 s37, s37, 320
        s_mul_i32 s38, s24, {128*1280}
        s_mov_b32 s36, 3277""")
        for j in range(2):
            k(f"""v_add_u32 v21, s37, v63
            v_mul_lo_u32 v22, v21, s36
            v_lshrrev_b32 v22, 16, v22
            v_mul_u32_u24 v23, 20, v22
            v_sub_u32 v21, v21, v23
            v_lshlrev_b32 v21, 6, v21
            v_mul_u32_u24 v22, 1280, v22
            v_add_u32 v21, v21, v22
            buffer_load_dword v240, v21, s[{R_X}:{R_X+3}], s38 offen
            s_add_u32 s37, s37, 256""")
        k.lab(lp0)
    if qkv and PFA == 1:
        lp0 = k.newlab("pfa")
        k(f"s_cmp_eq_u32 s5, 0\ns_cbranch_scc0 {lp0}")
        prefetch([(R_WQ, 640*3840), (R_X, 2048*1280)])
        k.lab(lp0)
    dopoll()
    stamp(k, 1)
    lst = k.newlab("st")
    if qkv: k(f"s_cmp_eq_u32 s5, 0\ns_cbranch_scc1 {lst}")
    for pp in range(5):
        k(f"s_add_u32 s38, s5, {soff + pp*16384}")
        for tt in range(2):
            r = ST + 4*pp + 2*tt
            k(f"buffer_load_dwordx2 v[{r}:{r+1}], v6, s[8:11], s38 offen offset:{256*tt}")
    k.lab(lst)
    k("s_barrier")
    stamp(k, 2)
    for l in reads(0): k(l)
    for gi in range(NST * 4):
        st, ks = divmod(gi, 4)
        f = FR + 16 * (gi & 1)
        if not CNT or (ks == 3 and not LAG): k("s_waitcnt lgkmcnt(0)")
        if ks == 3 and st + 1 < NST: k("s_barrier")
        if gi in (3, 19): stamp(k, 3 if gi == 3 else 4)
        if qkv and gi in (7, 11, 27): stamp(k, {7: 13, 11: 9, 27: 10}[gi])
        R = reads(gi + 1) if gi + 1 < NST * 4 else []
        ri = 0
        for mi, (ft, tt) in enumerate([(0, 0), (1, 0), (0, 1), (1, 1)] if CNT else [(0, 0), (0, 1), (1, 0), (1, 1)]):
            if CNT and mi < 3:
                k(f"s_waitcnt lgkmcnt({(3, 1, 0)[mi] + (ri if R else 0)})")
            a = ACC + 32 * ft + 16 * tt
            c = "0" if gi == 0 else f"v[{a}:{a+15}]"
            k(f"v_mfma_f32_32x32x16_bf16 v[{a}:{a+15}], v[{f+4*ft}:{f+4*ft+3}], v[{f+8+4*tt}:{f+8+4*tt+3}], {c}")
            for _ in range(2):
                if ri < len(R): k(R[ri]); ri += 1
        if qkv and gi == PFB:
            lp1 = k.newlab("pfb")
            k(f"s_cmp_eq_u32 s5, 0\ns_cbranch_scc0 {lp1}")
            prefetch([(R_WO, 640*1280), (R_W1, 640*3456), (R_W2, 1728*1280)])
            k.lab(lp1)
        if qkv and gi == CSCHK:
            lc_ = k.newlab("ck")
            k(f"s_cmp_eq_u32 s5, 0\ns_cbranch_scc0 {lc_}")
            stamp(k, 11)
            dbg_wait(k, 1, name)
            stamp(k, 12)
            k.lab(lc_)
            k(f"s_mov_b32 s34, {csoff}")
            cs_loads()
    if not qkv:
        k(f"s_cmp_eq_u32 s25, 13\ns_cselect_b32 s34, s30, 0\ns_cmp_eq_u32 s34, 1\ns_cbranch_scc1 {fin}")
    stamp(k, 5)
    k("s_waitcnt vmcnt(0)")
    stamp(k, 6)
    for pp in range(1, 5):
        k(f"v_pk_add_f32 v[{ST}:{ST+1}], v[{ST}:{ST+1}], v[{ST+4*pp}:{ST+4*pp+1}]\nv_pk_add_f32 v[{ST+2}:{ST+3}], v[{ST+2}:{ST+3}], v[{ST+4*pp+2}:{ST+4*pp+3}]")
    if qkv:
        ls_ = k.newlab("lz")
        k(f"""s_cmp_eq_u32 s5, 0
        s_cbranch_scc0 {ls_}
        s_lshl_b32 s38, s29, 6
        v_add_u32 v20, s38, v4
        v_lshlrev_b32 v20, 3, v20
        v_add_u32 v20, {STL}, v20
        s_barrier
        ds_read_b64 v[{ST}:{ST+1}], v20
        ds_read_b64 v[{ST+2}:{ST+3}], v20 offset:256
        s_waitcnt lgkmcnt(0)""")
        k.lab(ls_)
    for j in range(4): swap_add(k, ST + j, 20)
    sc = 20 ** -0.5 * math.log2(math.e)
    if qkv:
        k(f"s_cmp_lt_u32 s25, 5\ns_cselect_b32 s34, {f2h(sc)}, 1.0")
    k(f"s_mov_b32 s35, {f2h(1/640)}\ns_mov_b32 s36, {f2h(1e-5)}")
    for tt in range(2):
        m = 22 + 4*tt; r = 24 + 4*tt
        k(f"""v_mul_f32 v{m}, s35, v{ST+2*tt}
        v_mul_f32 v20, s35, v{ST+2*tt+1}
        v_fma_f32 v20, -v{m}, v{m}, v20
        v_add_f32 v20, s36, v20
        v_rsq_f32 v{r}, v20
        s_nop 0""")
        if qkv: k(f"v_mul_f32 v{r}, s34, v{r}")
    if not qkv:
        for ft in range(2):
            for i in range(4):
                r = B1 + 8*ft + 2*i; d = 224 + 16*ft + 4*i
                k(f"v_lshlrev_b32 v{d}, 16, v{r}\nv_and_b32 v{d+1}, 0xffff0000, v{r}\nv_lshlrev_b32 v{d+2}, 16, v{r+1}\nv_and_b32 v{d+3}, 0xffff0000, v{r+1}")
    k(f"""v_lshlrev_b32 v30, 15, v3
    v_lshlrev_b32 v31, 4, v5
    v_add_u32 v30, v30, v31
    s_lshr_b32 s37, s33, 3
    s_lshl_b32 s37, s37, 15
    s_add_u32 s37, s37, s5
    s_add_u32 s37, s37, {outoff}""")
    T = 32
    n = 0
    for ft in range(2):
        for i2 in range(2):
            for tt in range(2):
                a = ACC + 32*ft + 16*tt + 8*i2; cs = CS + 16*ft + 8*i2; m = 22 + 4*tt; r = 24 + 4*tt
                t = T + 4 * (n % 4); n += 1
                for p in range(4):
                    x = a + 2*p
                    k(f"v_pk_fma_f32 v[{x}:{x+1}], v[{m}:{m+1}], v[{cs+2*p}:{cs+2*p+1}], v[{x}:{x+1}] op_sel_hi:[0,1,1] neg_lo:[1,0,0] neg_hi:[1,0,0]")
                for p in range(4):
                    x = a + 2*p
                    if qkv:
                        k(f"v_pk_mul_f32 v[{x}:{x+1}], v[{r}:{r+1}], v[{x}:{x+1}] op_sel_hi:[0,1]")
                    else:
                        b = 224 + 16*ft + 8*i2 + 2*p
                        k(f"v_pk_fma_f32 v[{x}:{x+1}], v[{r}:{r+1}], v[{x}:{x+1}], v[{b}:{b+1}] op_sel_hi:[0,1,1]")
                if not qkv:
                    for p in range(8): k(f"v_max_f32 v{a+p}, 0, v{a+p}")
                    for p in range(4):
                        x = a + 2*p
                        k(f"v_pk_mul_f32 v[{x}:{x+1}], v[{x}:{x+1}], v[{x}:{x+1}]")
                for p in range(4):
                    k(f"v_cvt_pk_bf16_f32 v{t+p}, v{a+2*p}, v{a+2*p+1}")
                k(f"s_nop 1\nv_permlane32_swap_b32 v{t}, v{t+2}\nv_permlane32_swap_b32 v{t+1}, v{t+3}")
                k(f"s_nop 0\nbuffer_store_dwordx4 v[{t}:{t+3}], v30, s[8:11], s37 offen offset:{512*tt}{SC1}")
            k(f"s_add_u32 s37, s37, {2*PL}")
    stamp(k, 7)
    k.lab(fin)
    arrive(k, 24, CQ if qkv else CH, nowait=fin + '2')
    stamp(k, 8)
    stamp_flush(k, slot, 3)
    k.lab(end)

import struct
def f2h(x):
    return "0x%08x" % struct.unpack("<I", struct.pack("<f", x))[0]
```
